```python
import torch

def _softmax(x, axis=-1):
    return torch.softmax(x, dim=axis)

def _gelu(x):
    return torch.nn.functional.gelu(x, approximate='tanh')

def _silu(x):
    return torch.nn.functional.silu(x)

def _sigmoid(x):
    return torch.sigmoid(x)

def _layernorm(x, axis=-1, eps=1e-05):
    m = x.mean(dim=axis, keepdim=True)
    v = x.var(dim=axis, keepdim=True, unbiased=False)
    return (x - m) / torch.sqrt(v + eps)

def _scatter_add(tgt, idx, src, axis=0):
    return tgt.clone().index_add_(axis, idx, src)

def _segment_sum(src, seg, n):
    out = torch.zeros((n,) + src.shape[1:], dtype=src.dtype)
    return out.index_add_(0, seg, src)

def _pad(x, pw):
    flat = tuple((v for pair in reversed(pw) for v in pair))
    return torch.nn.functional.pad(x, flat)
kernel_name = 'adaLN_cond__gqa_block_cached__dense_activation_silu__prompt'

def setup_inputs():

    _w = lambda a: (lambda t: t.to(torch.bfloat16) if t.is_floating_point() else t)(torch.as_tensor(a))

    def _A_setup():
        B, Sq, D = (1, 2048, 512)
        Hq, Hkv, Sk, Dh = (32, 32, 2048, 128)
        assert Hq % Hkv == 0, (Hq, Hkv)
        return {'x': _w((lambda *s: torch.randn(*s, dtype=torch.bfloat16) * 0.1)(B, Sq, D)), 'k_cache': _w((lambda *s: torch.randn(*s, dtype=torch.bfloat16) * 0.8)(B, Hkv, Sk, Dh)), 'v_cache': _w((lambda *s: torch.randn(*s, dtype=torch.bfloat16) * 3.2)(B, Hkv, Sk, Dh)), 'wq': _w((lambda *s: torch.randn(*s, dtype=torch.bfloat16) * 0.8)(D, Hq * Dh) * D ** (-0.5)), 'wo': _w((lambda *s: torch.randn(*s, dtype=torch.bfloat16) * 3.2)(Hq * Dh, D) * (Hq * Dh) ** (-0.5))}
    _A_in = _A_setup()

    def _B_setup():
        B, S, D, F = (1, 2048, 512, 1376)
        return {'x': _w((lambda *s: torch.randn(*s, dtype=torch.bfloat16) * 0.1)(B, S, D)), 'w1': _w((lambda *s: torch.randn(*s, dtype=torch.bfloat16) * 3.2)(D, F) * D ** (-0.5)), 'w2': _w((lambda *s: torch.randn(*s, dtype=torch.bfloat16) * 3.2)(F, D) * F ** (-0.5))}
    _B_in = _B_setup()
    return {'A_x': _A_in['x'], 'A_k_cache': _A_in['k_cache'], 'A_v_cache': _A_in['v_cache'], 'A_wq': _A_in['wq'], 'A_wo': _A_in['wo'], 'B_x': _B_in['x'], 'B_w1': _B_in['w1'], 'B_w2': _B_in['w2'], 'c': _w((lambda *s: torch.randn(*s, dtype=torch.bfloat16) * 0.2)(1, 512) * 8.0), 'w_mod': _w((lambda *s: torch.randn(*s, dtype=torch.bfloat16) * 0.2)(512, 6 * 512) * 512 ** (-0.5) * 8.0)}

def reference(A_x, A_k_cache, A_v_cache, A_wq, A_wo, B_x, B_w1, B_w2, c, w_mod):

    def _A_ref(x, k_cache, v_cache, wq, wo):
        B, Sq, D = x.shape
        Hq, Dh = (32, 128)
        Hkv = k_cache.shape[1]
        rep = Hq // Hkv
        q = (lambda x, *d: x.permute(*d))((x @ wq).reshape(B, Sq, Hq, Dh), 0, 2, 1, 3)
        k = (lambda x, n, axis: torch.repeat_interleave(x, n, dim=axis))(k_cache, rep, axis=1)
        v = (lambda x, n, axis: torch.repeat_interleave(x, n, dim=axis))(v_cache, rep, axis=1)
        scores = torch.einsum('bhqd,bhkd->bhqk', q, k) * Dh ** (-0.5)
        p = _softmax(scores, axis=-1)
        o = torch.einsum('bhqk,bhkd->bhqd', p, v)
        return (lambda x, *d: x.permute(*d))(o, 0, 2, 1, 3).reshape(B, Sq, Hq * Dh) @ wo

    def _B_ref(x, w1, w2):
        h = torch.einsum('bsd,df->bsf', x, w1)
        h = _silu(h)
        out = torch.einsum('bsf,fd->bsd', h, w2)
        return out
    x = A_x
    mod = (_silu(c) @ w_mod).reshape(c.shape[0], 6, 1, -1)
    sa, ca, ga, sb, cb, gb = (mod[:, 0].clone(), mod[:, 1].clone(), mod[:, 2].clone(), mod[:, 3].clone(), mod[:, 4].clone(), mod[:, 5].clone())
    h = _layernorm(x, axis=-1) * (1 + ca) + sa
    x = x + ga * _A_ref(h, A_k_cache, A_v_cache, A_wq, A_wo)
    h = _layernorm(x, axis=-1) * (1 + cb) + sb
    x = x + gb * _B_ref(h, B_w1, B_w2)
    return x
```

```python
import re

TRANS = ('v_exp_f32', 'v_log_f32', 'v_rcp_f32', 'v_rsq_f32', 'v_sqrt_f32', 'v_sin_f32', 'v_cos_f32')

def v(n, cnt=1):
    return f'v{n}' if cnt == 1 else f'v[{n}:{n+cnt-1}]'
def a(n, cnt=1):
    return f'a{n}' if cnt == 1 else f'a[{n}:{n+cnt-1}]'
def s(n, cnt=1):
    return f's{n}' if cnt == 1 else f's[{n}:{n+cnt-1}]'

class R:
    def __init__(self, kind, base, cnt=1):
        self.kind, self.base, self.cnt = kind, base, cnt
    def __getitem__(self, i):
        if isinstance(i, slice):
            st = i.start or 0
            en = i.stop if i.stop is not None else self.cnt
            assert 0 <= st < en <= self.cnt, (st, en, self.cnt)
            return R(self.kind, self.base + st, en - st)
        assert 0 <= i < self.cnt, (i, self.cnt)
        return R(self.kind, self.base + i, 1)
    def sub(self, st, cnt):
        return self[st:st + cnt]
    def __str__(self):
        if self.cnt == 1:
            return f'{self.kind}{self.base}'
        return f'{self.kind}[{self.base}:{self.base+self.cnt-1}]'
    __repr__ = __str__
    def __format__(self, spec):
        return str(self)

class Alloc:
    def __init__(self, kind, start, limit):
        self.kind, self.next, self.limit = kind, start, limit
        self.hi = start
    def __call__(self, cnt=1, align=1):
        if cnt >= 2 and align < 2:
            align = 2
        if self.kind == 's' and cnt >= 4 and align < 4:
            align = 4
        b = (self.next + align - 1) // align * align
        self.next = b + cnt
        assert self.next <= self.limit, f'out of {self.kind} regs: {self.next} > {self.limit}'
        self.hi = max(self.hi, self.next)
        return R(self.kind, b, cnt)

_reg_re = re.compile(r'^(-|abs\()?([vas])(?:(\d+)|\[(\d+):(\d+)\])\)?$')

def regs_of(tok):
    tok = tok.strip()
    if tok in ('vcc', 'exec', 'm0', 'scc'):
        return [tok]
    if tok in ('vcc_lo', 'vcc_hi'):
        return ['vcc']
    if tok in ('exec_lo', 'exec_hi'):
        return ['exec']
    m = _reg_re.match(tok)
    if not m:
        return []
    k = m.group(2)
    if m.group(3) is not None:
        return [(k, int(m.group(3)))]
    return [(k, i) for i in range(int(m.group(4)), int(m.group(5)) + 1)]

def split_ops(rest):
    out, depth, cur = [], 0, ''
    for ch in rest:
        if ch in '[(':
            depth += 1
        if ch in '])':
            depth -= 1
        if ch == ',' and depth == 0:
            out.append(cur.strip()); cur = ''
        else:
            cur += ch
    if cur.strip():
        out.append(cur.strip())
    mods = ''
    if out:
        last = out[-1].split(None, 1)
        out[-1] = last[0]
        if len(last) > 1:
            mods = last[1]
    return out, mods

class Ins:
    def __init__(self, text):
        self.text = text
        t = text.split(';')[0].strip()
        self.op, _, rest = t.partition(' ')
        self.ops, self.mods = split_ops(rest.strip()) if rest.strip() else ([], '')
        op = self.op
        for suf in ('_e32', '_e64', '_dpp', '_sdwa'):
            if op.endswith(suf):
                op = op[:-len(suf)]
        self.base = op
        self.is_dpp = self.op.endswith('_dpp')
        self.rd, self.wr = set(), set()
        self.cls = None
        self.passes = 0
        self.C = self.D = None
        o = [regs_of(x) for x in self.ops]
        def R_(*idx):
            for i in idx:
                if i < len(o):
                    self.rd.update(o[i])
        def W_(*idx):
            for i in idx:
                self.wr.update(o[i])
        if op.startswith('v_mfma'):
            self.cls = 'mfma'
            W_(0); R_(1, 2, 3)
            self.D = o[0]; self.AB = set(o[1]) | set(o[2]); self.C = o[3]
            if '32x32x16' in op: self.passes = 8
            elif '16x16x32' in op: self.passes = 4
            elif '4x4x4' in op: self.passes = 2
            else: raise ValueError(op)
        elif op.startswith('ds_read') or op.startswith('ds_bpermute') or op.startswith('ds_swizzle'):
            self.cls = 'ds_ld'; W_(0); R_(*range(1, len(o)))
        elif op.startswith('ds_write') or op.startswith('ds_add') or op.startswith('ds_max') or op.startswith('ds_or'):
            self.cls = 'ds_st'; R_(*range(len(o)))
        elif op.startswith('buffer_load') or op.startswith('global_load'):
            if ' lds' in (' ' + self.mods) or 'load_lds' in op:
                self.cls = 'dma'; R_(*range(len(o))); self.rd.add('m0')
            else:
                self.cls = 'vm_ld'; W_(0); R_(*range(1, len(o)))
        elif op.startswith('buffer_store') or op.startswith('global_store') or op.startswith('buffer_atomic') or op.startswith('global_atomic'):
            self.cls = 'vm_st'; R_(*range(len(o)))
            if op.startswith('buffer'):
                self.data = set(o[0])
            else:
                self.data = set(o[1])
            self.wide = op.endswith('x4') or op.endswith('x3')
            if 'atomic' in op and 'sc0' in self.mods:
                self.cls = 'vm_ld'; W_(0)
        elif op in ('buffer_wbl2', 'buffer_inv'):
            self.cls = 'vm_st'; self.data = set(); self.wide = False
        elif op.startswith('s_load') or op.startswith('s_buffer_load') or op in ('s_memtime', 's_memrealtime'):
            self.cls = 'smem'; W_(0); R_(*range(1, len(o)))
        elif op == 's_waitcnt':
            self.cls = 'wait'
            self.vm = self.lgkm = None
            m = re.search(r'vmcnt\((\d+)\)', t)
            if m: self.vm = int(m.group(1))
            m = re.search(r'lgkmcnt\((\d+)\)', t)
            if m: self.lgkm = int(m.group(1))
        elif op == 's_nop':
            self.cls = 'nop'; self.n = int(self.ops[0], 0) + 1
        elif op in ('s_barrier', 's_setprio', 's_endpgm', 's_sleep') or op.startswith('s_branch') or op.startswith('s_cbranch'):
            self.cls = 'ctl'
            if 'vcc' in op: self.rd.add('vcc')
            if 'scc' in op: self.rd.add('scc')
            if 'exec' in op: self.rd.add('exec')
        elif op.startswith('s_cmp'):
            self.cls = 'salu'; R_(*range(len(o))); self.wr.add('scc')
        elif op.startswith('s_'):
            self.cls = 'salu'; W_(0); R_(*range(1, len(o)))
            if 'saveexec' in op:
                self.wr.add('exec'); self.rd.add('exec')
            if op.startswith('s_addc') or op.startswith('s_cselect') or op.startswith('s_subb'):
                self.rd.add('scc')
            if not op.startswith('s_mov') and not op.startswith('s_mul') and not op.startswith('s_getreg') and not op.startswith('s_cselect'):
                self.wr.add('scc')
        elif op.startswith('v_'):
            self.cls = 'valu'
            if op.startswith('v_cmp'):
                W_(0); R_(*range(1, len(o)))
                if op.startswith('v_cmpx'): self.wr.add('exec')
            elif op.startswith('v_permlane') and 'swap' in op:
                W_(0, 1); R_(0, 1)
            elif op in ('v_add_co_u32', 'v_sub_co_u32'):
                W_(0, 1); R_(2, 3)
            elif op in ('v_addc_co_u32', 'v_subb_co_u32'):
                W_(0, 1); R_(2, 3, 4)
            elif op in ('v_fmac_f32', 'v_dot2c_f32_bf16', 'v_writelane_b32'):
                W_(0); R_(*range(len(o)))
            elif op == 'v_nop':
                pass
            else:
                W_(0); R_(*range(1, len(o)))
                if self.is_dpp and 'bound_ctrl' not in self.mods:
                    R_(0)
                if self.op.endswith('_sdwa') and 'UNUSED_PRESERVE' in self.mods:
                    R_(0)
            self.trans = op in TRANS
        else:
            raise ValueError('unknown instruction: ' + text)

def is_label(x):
    return x.rstrip().endswith(':') and not x.strip().startswith(';')
def is_directive(x):
    t = x.strip()
    return t == '' or t.startswith(';') or t.startswith('.')

def check(trace, name='', verbose=False, fixes=None, objs=None):
    ins = [Ins(x) for x in trace if not is_label(x) and not is_directive(x)]
    if objs is not None: objs.extend(ins)
    probs = []
    pos = []
    p = 0
    for i in ins:
        pos.append(p)
        p += i.n if i.cls == 'nop' else 1
    def dist(i, j):
        return pos[j] - pos[i] - (ins[i].n if ins[i].cls == 'nop' else 1)
    W = 24
    isv = lambda r: isinstance(r, tuple) and r[0] in 'va'
    iss = lambda r: (isinstance(r, tuple) and r[0] == 's') or r == 'vcc'
    for j, c in enumerate(ins):
        i = j - 1
        while i >= 0 and dist(i, j) < W:
            pr = ins[i]
            d = dist(i, j)
            need = 0; why = ''
            def req(n, w):
                nonlocal need, why
                if n > need: need, why = n, w
            if pr.cls == 'mfma':
                D = set(pr.D)
                t1 = {2: 5, 4: 8, 8: 12}[pr.passes]
                if c.cls == 'mfma':
                    if D & c.AB: req(t1, 'mfma D -> mfma A/B')
                    if D & set(c.C):
                        if list(c.C) == list(pr.D) and c.passes == pr.passes:
                            req(2 if pr.passes == 2 else 0, 'mfma chain')
                        else:
                            req({2: 4, 4: 6, 8: 10}[pr.passes], 'mfma D -> mfma C overlap')
                    elif D & set(c.D):
                        req({2: 4, 4: 6, 8: 10}[pr.passes], 'mfma D -> mfma D (waw)')
                elif c.cls in ('valu', 'ds_ld', 'ds_st', 'vm_ld', 'vm_st', 'dma'):
                    if D & (c.rd | c.wr): req(t1, 'mfma D -> valu/mem')
                if c.cls == 'valu' and (set(pr.C) & c.wr):
                    req({2: 1, 4: 3, 8: 7}[pr.passes], 'mfma C read -> valu write')
            if pr.cls == 'valu':
                wv = {r for r in pr.wr if isv(r)}
                ws = {r for r in pr.wr if iss(r)}
                if pr.base.startswith('v_dot') and c.base != pr.base and (wv & (c.rd | c.wr)): req(3, 'dot -> other')
                if c.cls == 'mfma' and (wv & c.rd): req(2, 'valu -> mfma operand')
                if c.cls == 'mfma' and 'exec' in pr.wr: req(4, 'exec -> mfma')
                if c.cls == 'valu':
                    if pr.trans and (wv & c.rd) and not c.trans: req(1, 'trans -> valu')
                    if pr.trans and (wv & c.rd) and c.trans: req(1, 'trans -> trans (conservative)')
                    if c.base.startswith('v_permlane') and (wv & c.rd): req(2, 'valu -> permlane')
                    if c.base in ('v_readlane_b32', 'v_readfirstlane_b32') and (wv & c.rd): req(1, 'valu -> readlane')
                    if c.is_dpp and (wv & c.rd): req(2, 'valu -> dpp')
                    if c.is_dpp and 'exec' in pr.wr: req(5, 'exec -> dpp')
                    if ws & c.rd: req(2, 'valu sgpr -> valu read')
                    if pr.op.endswith('_sdwa') and (wv & c.rd): req(1, 'sdwa -> valu')
                if c.cls in ('vm_ld', 'vm_st', 'dma') and (ws & c.rd): req(5, 'valu sgpr -> vmem')
                if c.cls == 'ctl' and ('vcc' in ws and 'vcc' in c.rd): req(0, '')
                if c.cls == 'salu' and (ws & c.rd): req(1, 'valu sgpr -> salu (pad)')
            if pr.cls == 'salu' and 'm0' in pr.wr and c.cls == 'dma': req(1, 'm0 -> dma')
            if pr.cls == 'vm_st' and pr.wide and (pr.data & c.wr):
                req(2 if c.cls == 'valu' else 1, 'store data WAR')
            if d < need:
                if fixes is not None: fixes.append((c, need - d))
                probs.append(f'{name}: HAZARD {why}: need {need} have {d}\n    {pr.text}\n    {c.text}')
            i -= 1
    vm, lg = [], []
    for j, c in enumerate(ins):
        if c.cls == 'wait':
            if c.vm is not None:
                while len(vm) > c.vm: vm.pop(0)
            if c.lgkm is not None:
                if any(x.cls == 'smem' for x in lg) and c.lgkm != 0:
                    pass
                else:
                    while len(lg) > c.lgkm: lg.pop(0)
            continue
        touched = c.rd | c.wr
        for x in vm + lg:
            if x.wr & touched and not (x.cls == c.cls and c.cls in ('ds_ld', 'vm_ld') and not (x.wr & c.rd)):
                probs.append(f'{name}: UNWAITED load result\n    {x.text}\n    {c.text}')
        if c.cls in ('vm_ld', 'vm_st', 'dma'): vm.append(c)
        if c.cls in ('ds_ld', 'ds_st', 'smem'): lg.append(c)
        if len(vm) > 63: probs.append(f'{name}: vmcnt overflow at {c.text}')
        if len(lg) > 15 and verbose: probs.append(f'{name}: note lgkmcnt>15 at {c.text}')
    return probs


def autopad(ctx, lines):
    lines = list(lines)
    for _ in range(1000):
        fixes, objs = [], []
        check(ctx + lines, fixes=fixes, objs=objs)
        idx = [i for i, x in enumerate(ctx + lines) if not is_label(x) and not is_directive(x)]
        todo = [(idx[objs.index(c)] - len(ctx), n) for c, n in fixes]
        todo = [t for t in todo if t[0] >= 0]
        if not todo: return lines
        p = min(t[0] for t in todo)
        n = max(t[1] for t in todo if t[0] == p)
        lines.insert(p, f'    s_nop {n - 1}')
    raise RuntimeError('autopad did not converge')
```

```python
from cg import *

WS_H = 0
WS_O = 2 << 20
WS_Y = 18 << 20
WS_X1 = 20 << 20
WS_F = 22 << 20
WS_ST = 28 << 20
WS_MOD = 29 << 20
WS_GS = (29 << 20) + 8192
MF = 'v_mfma_f32_16x16x32_bf16'
WS_STAMP = 64 << 20

class Stream:
    def __init__(self):
        self.l = []
    def __call__(self, t):
        t = t.strip()
        self.l.append('    ' + t if not is_label(t) else t)
    def ext(self, xs):
        for x in xs: self(x)

def wrap(kernels, header=''):
    out = [header] if header else []
    for name, text, m in kernels:
        out.append(f'; @launch kernel={name} grid=({m["grid"]},1,1) block=({m["block"]},1,1) lds={m["lds"]}')
    out.append('.amdgcn_target "amdgcn-amd-amdhsa--gfx950"')
    out.append('.text')
    seen = set()
    for name, text, m in kernels:
        if name in seen: continue
        seen.add(name)
        out += [f'.globl {name}', '.p2align 8', f'.type {name},@function', f'{name}:'] + text
    out.append('.section .rodata,"a"')
    seen = set()
    for name, text, m in kernels:
        if name in seen: continue
        seen.add(name)
        out += ['.p2align 6', f'.amdhsa_kernel {name}',
                f'  .amdhsa_next_free_vgpr {m["vgpr"]}', f'  .amdhsa_next_free_sgpr {m["sgpr"]}',
                f'  .amdhsa_accum_offset {m["accum"]}', '  .amdhsa_group_segment_fixed_size 0',
                '  .amdhsa_kernarg_size 104', '  .amdhsa_user_sgpr_count 2',
                '  .amdhsa_user_sgpr_kernarg_segment_ptr 1', '  .amdhsa_system_sgpr_workgroup_id_x 1',
                '  .amdhsa_float_denorm_mode_32 3',
                '.end_amdhsa_kernel']
    return '\n'.join(out) + '\n'

def mk_srd(e, srd, ptr, off_s, nrec):
    e(f's_add_u32 {srd[0]}, {ptr[0]}, {off_s}')
    e(f's_addc_u32 {srd[1]}, {ptr[1]}, 0')
    e(f's_mov_b32 {srd[2]}, {hex(nrec)}')
    e(f's_mov_b32 {srd[3]}, 0x20000')

class Stamps:
    def __init__(self, on, sa, n=6):
        self.on, self.n = on, n
        if on:
            self.r = sa(4 * n, 4); self.srd = sa(4)
    def __call__(self, i):
        if not self.on: return []
        r = self.r
        return [f's_memtime {r[4*i:4*i+2]}', f's_memrealtime {r[4*i+2:4*i+4]}', 's_waitcnt lgkmcnt(0)']
    def dump(self, e, wsptr, s_w, s_t, vtmp, vaddr, base=0):
        if not self.on: return
        mk_srd(e, self.srd, wsptr, WS_STAMP + base, 0x40000)
        e(f's_lshl_b32 {s_t}, s2, 3')
        e(f's_add_u32 {s_t}, {s_t}, {s_w}')
        e(f's_lshl_b32 {s_t}, {s_t}, 7')
        e(f'v_mov_b32 {vaddr}, {s_t}')
        big = R('v', vtmp.base, 4 * self.n)
        for i in range(4 * self.n):
            e(f'v_mov_b32 {big[i]}, {self.r[i]}')
        for i in range(self.n):
            e(f'buffer_store_dwordx4 {big[4*i:4*i+4]}, {vaddr}, {self.srd}, 0 offen offset:{16*i}')

def rnd_bf16(e, dst, src):
    e(f'v_cvt_pk_bf16_f32 {dst}, {src}, {src}')
    e(f'v_and_b32 {dst}, 0xffff0000, {dst}')

def xsum4(e, regs, tmps, op='v_add_f32'):
    for sw in ('v_permlane32_swap_b32', 'v_permlane16_swap_b32'):
        for r, t in zip(regs, tmps): e(f'v_mov_b32 {t}, {r}')
        e('s_nop 1')
        for r, t in zip(regs, tmps): e(f'{sw} {t}, {r}')
        for r, t in zip(regs, tmps): e(f'{op} {r}, {t}, {r}')

def ln_scalars(e, mean, var, tmp):
    rnd_bf16(e, mean, mean)
    e(f'v_max_f32 {var}, 0, {var}')
    rnd_bf16(e, var, var)
    e(f'v_add_f32 {var}, 0x3727c5ac, {var}')
    rnd_bf16(e, var, var)
    e(f'v_sqrt_f32 {var}, {var}')
    e('s_nop 0')
    rnd_bf16(e, var, var)
    e(f'v_rcp_f32 {var}, {var}')
    e('s_nop 0')

def silu(e, xs, tmps):
    for x, t in zip(xs, tmps): e(f'v_mul_f32 {t}, 0xbfb8aa3b, {x}')
    for x, t in zip(xs, tmps): e(f'v_exp_f32 {t}, {t}')
    for x, t in zip(xs, tmps): e(f'v_add_f32 {t}, 1.0, {t}')
    for x, t in zip(xs, tmps): e(f'v_rcp_f32 {t}, {t}')
    for x, t in zip(xs, tmps): e(f'v_mul_f32 {x}, {x}, {t}')
```

```python
from common import *
import struct
C_SCALE = 1.4426950408889634 * 128 ** -0.5
f2h = lambda x: hex(struct.unpack('<I', struct.pack('<f', x))[0])

def gen_k0(name, stamps=False, opt=None):
    opt = opt or {}
    va = Alloc('v', 1, 256); aa = Alloc('a', 0, 256); sa = Alloc('s', 4, 100)
    XR = va(64, 4)
    CR = va(16, 4)
    TF = va(32, 4)
    TG = va(32, 4)
    ACC = [va(4, 4) for _ in range(9)]
    RX = va(8, 4)
    AF = [aa(4, 4) for _ in range(36)]
    voffA, voffE, vlane, vl16 = va(), va(), va(), va()
    aaddr = [va() for _ in range(4)]
    eaddr = va()
    t0, t1, t2, t3, sm, sq = [va() for _ in range(6)]
    srdW, srdE, srdX, srdC, srdH, srdM = [sa(4) for _ in range(6)]
    sptr = sa(8, 4)
    s_w, s_rb, s_cb, s_xb, s_t, s_u, s_m0b, s_ka, s_one = [sa() for _ in range(9)]
    stamp = Stamps(stamps, sa)
    WB = 36864
    RED = 4 * WB
    LDS_BYTES = RED + 4 * 9 * 64

    e = Stream()
    e('s_cmp_ge_u32 s2, 256')
    e(f's_cbranch_scc1 {name}_done')
    e(f's_load_dwordx2 {sptr[0:2]}, s[0:1], 0')
    e(f's_load_dwordx4 {sptr[4:8]}, s[0:1], 64')
    e(f's_load_dwordx2 {sptr[2:4]}, s[0:1], 96')
    e.ext(stamp(0))
    e(f'v_and_b32 {vlane}, 63, v0')
    e(f'v_lshrrev_b32 {t0}, 6, v0')
    e(f's_and_b32 {s_t}, s2, 7')
    e(f'v_readfirstlane_b32 {s_w}, {t0}')
    e(f's_lshl_b32 {s_rb}, {s_t}, 2')
    e(f's_lshr_b32 {s_u}, s2, 6')
    e(f's_add_u32 {s_rb}, {s_rb}, {s_u}')
    e(f's_bfe_u32 {s_cb}, s2, 0x30003')
    e(f's_lshl_b32 {s_xb}, {s_t}, 4')
    e(f's_bfe_u32 {s_u}, s2, 0x40003')
    e(f's_add_u32 {s_xb}, {s_xb}, {s_u}')
    e(f'v_lshrrev_b32 {t0}, 3, {vlane}')
    e(f'v_and_b32 {t1}, 6, {t0}')
    e(f'v_and_b32 {t2}, 7, {vlane}')
    e(f'v_xor_b32 {t1}, {t1}, {t2}')
    e(f'v_lshlrev_b32 {t1}, 4, {t1}')
    e(f'v_mul_u32_u24 {t0}, 6144, {t0}')
    e(f'v_add_u32 {voffA}, {t0}, {t1}')
    e(f'v_lshrrev_b32 {t0}, 1, {vlane}')
    e(f'v_mul_u32_u24 {t0}, 6144, {t0}')
    e(f'v_and_b32 {t1}, 1, {vlane}')
    e(f'v_lshl_add_u32 {voffE}, {t1}, 4, {t0}')
    e(f'v_and_b32 {t0}, 15, {vlane}')
    e(f'v_lshrrev_b32 {t1}, 4, {vlane}')
    e(f's_lshl_b32 {s_t}, {s_w}, 14')
    e(f'v_lshlrev_b32 {t2}, 10, {t0}')
    e(f'v_add_u32 {t2}, {s_t}, {t2}')
    e(f'v_lshl_add_u32 {t3}, {t1}, 3, {t2}')
    e(f'v_lshl_add_u32 {t2}, {t1}, 4, {t2}')
    e(f's_lshl_b32 {s_t}, {s_w}, 8')
    e(f'v_lshlrev_b32 {t1}, 3, {t1}')
    e(f'v_add_u32 {t1}, {s_t}, {t1}')
    e(f's_mul_i32 {s_m0b}, {s_w}, {WB}')
    e(f's_mul_i32 {s_ka}, {s_w}, {128 * 6144}')
    e('s_waitcnt lgkmcnt(0)')
    mk_srd(e, srdC, sptr[4:6], 0, 1024)
    for ks in range(4):
        for u in range(2):
            e(f'buffer_load_dwordx2 {CR[4*ks+2*u:4*ks+2*u+2]}, {t1}, {srdC}, 0 offen offset:{ks * 64 + u * 32}')
    e(f's_lshl_b32 {s_t}, {s_cb}, 7')
    mk_srd(e, srdW, sptr[6:8], s_t, 511 * 6144 + 1024 + 128)
    e(f's_lshl_b32 {s_t}, {s_xb}, 5')
    e(f's_add_u32 {s_t}, {s_t}, 2048')
    mk_srd(e, srdE, sptr[6:8], s_t, 511 * 6144 + 32)
    e(f's_lshl_b32 {s_t}, {s_rb}, 16')
    mk_srd(e, srdX, sptr[0:2], s_t, 65536)
    for i in range(16):
        e(f'buffer_load_dwordx4 {XR[4*i:4*i+4]}, {t2}, {srdX}, 0 offen offset:{i * 64}')
    for ks in range(4):
        for tile in range(2):
            e(f's_add_u32 m0, {s_m0b}, {ks * 9216 + tile * 4096}')
            for m in range(4):
                e(f's_add_u32 {s_t}, {s_ka}, {(ks * 32 + m * 8) * 6144 + tile * 1024 - m * 1024}')
                e(f'buffer_load_dwordx4 {voffA}, {srdW}, {s_t} offen offset:{m*1024} lds')
        e(f's_add_u32 m0, {s_m0b}, {ks * 9216 + 8192}')
        e(f's_add_u32 {s_t}, {s_ka}, {ks * 32 * 6144}')
        e(f'buffer_load_dwordx4 {voffE}, {srdE}, {s_t} offen lds')
    e(f'v_lshrrev_b32 {t0}, 2, {vlane}')
    e(f'v_and_b32 {t1}, 6, {t0}')
    e(f'v_bfe_u32 {t2}, {vlane}, 1, 1')
    e(f'v_xor_b32 {t1}, {t1}, {t2}')
    e(f'v_lshlrev_b32 {t1}, 4, {t1}')
    e(f'v_lshl_add_u32 {t1}, {t0}, 7, {t1}')
    e(f'v_and_b32 {t2}, 1, {vlane}')
    e(f'v_lshl_add_u32 {t1}, {t2}, 3, {t1}')
    e(f'v_add_u32 {aaddr[0]}, {s_m0b}, {t1}')
    for nb in range(1, 4):
        e(f'v_xor_b32 {aaddr[nb]}, {nb << 5}, {aaddr[0]}')
    e(f'v_lshlrev_b32 {eaddr}, 3, {vlane}')
    e(f'v_add_u32 {eaddr}, {s_m0b}, {eaddr}')
    e(f'v_lshlrev_b32 {vl16}, 4, {vlane}')
    e(f's_mov_b32 {s_one}, 0x3f803f80')
    e(f's_lshl_b32 {s_t}, {s_rb}, 16')
    e(f's_lshl_b32 {s_u}, {s_w}, 14')
    e(f's_add_u32 {s_t}, {s_t}, {s_u}')
    e(f's_lshl_b32 {s_u}, {s_cb}, 11')
    e(f's_add_u32 {s_t}, {s_t}, {s_u}')
    if WS_H: e(f's_add_u32 {s_t}, {s_t}, {WS_H}')
    mk_srd(e, srdH, sptr[2:4], s_t, 2048)
    mk_srd(e, srdM, sptr[2:4], WS_MOD, 8192 + 16384)
    e('s_waitcnt vmcnt(52)')
    for i in range(16):
        e(f'v_lshlrev_b32 {TF[2*i]}, 16, {CR[i]}')
        e(f'v_and_b32 {TF[2*i+1]}, 0xffff0000, {CR[i]}')
    silu(e, [TF[i] for i in range(32)], [TG[i] for i in range(32)])
    for i in range(16):
        e(f'v_cvt_pk_bf16_f32 {CR[i]}, {TF[2*i]}, {TF[2*i+1]}')
    e(f's_lshl_b32 {s_t}, {s_cb}, 7')
    for nb in range(4):
        e(f'buffer_load_dwordx2 {RX[2*nb:2*nb+2]}, {t3}, {srdX}, {s_t} offen offset:{nb * 32}')
    e(f'v_mov_b32 {sm}, 0'); e(f'v_mov_b32 {sq}, 0')
    for i in range(16):
        if i % 4 == 0: e(f's_waitcnt vmcnt({40 + 12 - i})')
        for j in range(4):
            e(f'v_dot2c_f32_bf16 {sm}, {s_one}, {XR[4*i+j]}')
            e(f'v_dot2c_f32_bf16 {sq}, {XR[4*i+j]}, {XR[4*i+j]}')
    e('s_nop 2')
    xsum4(e, [sm, sq], [t0, t1])
    e(f'v_mul_f32 {sm}, 0x3b000000, {sm}')
    e(f'v_mul_f32 {sq}, 0x3b000000, {sq}')
    e(f'v_fma_f32 {sq}, -{sm}, {sm}, {sq}')
    ln_scalars(e, sm, sq, t0)
    e(f'v_mul_f32 {sq}, {f2h(C_SCALE)}, {sq}')
    e.ext(stamp(1))
    for ks in range(4):
        e(f's_waitcnt vmcnt({4 + 9 * (3 - ks)})')
        for tile in range(2):
            for nb in range(4):
                for u in range(2):
                    e(f'ds_read_b64_tr_b16 {AF[9*ks + 4*tile + nb].sub(2*u, 2)}, {aaddr[nb]} offset:{ks * 9216 + tile * 4096 + u * 2048}')
        for u in range(2):
            e(f'ds_read_b64_tr_b16 {AF[9*ks + 8].sub(2*u, 2)}, {eaddr} offset:{ks * 9216 + 8192 + u * 512}')
        e('s_waitcnt lgkmcnt(0)')
        for i in range(9):
            e(f'{MF} {ACC[i]}, {AF[9*ks + i]}, {CR[4*ks:4*ks+4]}, {ACC[i] if ks else 0}')
    e.ext(stamp(2))
    e(f'v_lshrrev_b32 {t0}, 4, {vlane}')
    e(f'v_lshlrev_b32 {t0}, 4, {t0}')
    e(f'v_add_u32 {t0}, {RED}, {t0}')
    e(f's_mul_i32 {s_t}, {s_w}, 576')
    e(f'v_add_u32 {t1}, {s_t}, {t0}')
    e('s_nop 3')
    for i in range(9):
        e(f'ds_write_b128 {t1}, {ACC[i]} offset:{i * 64}')
    e('s_waitcnt lgkmcnt(0)')
    e('s_barrier')
    PR = [R('v', XR.base, 36), R('v', XR.base + 36, 36), R('v', XR.base + 72, 36)]
    assert XR.base + 108 <= TG.base
    P4 = PR + [R('v', ACC[0].base, 36)]
    for w in range(4):
        for i in range(9):
            e(f'ds_read_b128 {P4[w][4*i:4*i+4]}, {t0} offset:{w * 576 + i * 64}')
        if w == 1 or w == 3: e('s_waitcnt lgkmcnt(0)')
    M = P4[3]
    for i in range(36):
        e(f'v_add_f32 {P4[0][i]}, {P4[0][i]}, {P4[1][i]}')
        e(f'v_add_f32 {M[i]}, {P4[2][i]}, {M[i]}')
    for i in range(36):
        e(f'v_add_f32 {M[i]}, {P4[0][i]}, {M[i]}')
    for i in range(36):
        rnd_bf16(e, M[i], M[i])
    SA = [M[i] for i in range(16)]; CA = [M[16 + i] for i in range(16)]; EX = M[32:36]
    X = [TG[i] for i in range(16)]
    e('s_waitcnt vmcnt(0)')
    for i in range(8):
        e(f'v_lshlrev_b32 {X[2*i]}, 16, {RX[i]}')
        e(f'v_and_b32 {X[2*i+1]}, 0xffff0000, {RX[i]}')
    for i in range(16):
        e(f'v_add_f32 {CA[i]}, 1.0, {CA[i]}')
        e(f'v_sub_f32 {X[i]}, {X[i]}, {sm}')
        rnd_bf16(e, CA[i], CA[i])
        e(f'v_mul_f32 {X[i]}, {X[i]}, {sq}')
        e(f'v_mul_f32 {SA[i]}, {f2h(C_SCALE)}, {SA[i]}')
        e(f'v_fma_f32 {X[i]}, {X[i]}, {CA[i]}, {SA[i]}')
    for i in range(8):
        e(f'v_cvt_pk_bf16_f32 {RX[i]}, {X[2*i]}, {X[2*i+1]}')
    st_ = opt.get('st', '')
    for v_ in range(2):
        e(f'buffer_store_dwordx4 {RX[4*v_:4*v_+4]}, {vl16}, {srdH}, 0 offen offset:{v_ * 1024}{st_}')
    e(f's_cmp_lg_u32 {s_w}, 0')
    e(f's_cbranch_scc1 {name}_fin')
    e(f's_lshr_b32 {s_t}, {s_xb}, 5')
    e(f's_and_b32 {s_u}, {s_xb}, 31')
    e(f's_cmp_eq_u32 {s_t}, 2')
    e(f's_cbranch_scc0 {name}_n2')
    for r in range(4):
        e(f'v_add_f32 {EX[r]}, 1.0, {EX[r]}')
        rnd_bf16(e, EX[r], EX[r])
    e(f'{name}_n2:')
    e(f's_cmp_eq_u32 {s_t}, 1')
    e(f's_cbranch_scc1 {name}_frag')
    e(f's_lshl_b32 {s_ka}, {s_u}, 6')
    e(f's_cmp_eq_u32 {s_t}, 3')
    e(f's_cselect_b32 {s_m0b}, 2048, 0')
    e(f's_cmp_eq_u32 {s_t}, 2')
    e(f's_cselect_b32 {s_m0b}, 4096, {s_m0b}')
    e(f's_add_u32 {s_ka}, {s_ka}, {s_m0b}')
    e(f'v_and_b32 {t0}, 15, {vlane}')
    e(f'v_lshlrev_b32 {t0}, 20, {t0}')
    e(f'v_and_b32 {t1}, 48, {vlane}')
    e(f'v_add_u32 {t0}, {t0}, {t1}')
    e(f'buffer_store_dwordx4 {EX}, {t0}, {srdM}, {s_ka} offen{st_}')
    e(f's_cmp_eq_u32 {s_t}, 2')
    e(f's_cbranch_scc0 {name}_fin')
    e(f'{name}_frag:')
    e(f's_and_b32 {s_t}, {s_t}, 1')
    e(f'v_and_b32 {t0}, 1, {vlane}')
    e(f'v_xor_b32 {t0}, {s_t}, {t0}')
    e(f'v_lshlrev_b32 {t0}, 20, {t0}')
    e(f'v_add_u32 {t0}, {t0}, {vl16}')
    e(f's_lshr_b32 {s_ka}, {s_u}, 1')
    e(f's_lshl_b32 {s_ka}, {s_ka}, 10')
    e(f's_and_b32 {s_u}, {s_u}, 1')
    e(f's_lshl_b32 {s_u}, {s_u}, 3')
    e(f's_add_u32 {s_ka}, {s_ka}, {s_u}')
    e(f's_add_u32 {s_ka}, {s_ka}, 8192')
    e(f'v_cvt_pk_bf16_f32 {TG[0]}, {EX[0]}, {EX[1]}')
    e(f'v_cvt_pk_bf16_f32 {TG[1]}, {EX[2]}, {EX[3]}')
    e(f'buffer_store_dwordx2 {TG[0:2]}, {t0}, {srdM}, {s_ka} offen{st_}')
    e(f'{name}_fin:')
    if stamps:
        e('s_waitcnt vmcnt(0)')
        e.ext(stamp(3)); e.ext(stamp(4)); e.ext(stamp(5))
        stamp.dump(e, sptr[2:4], s_w, s_t, XR, t2, base=opt.get('stampbase', 0))
    e(f'{name}_done:')
    e('s_endpgm')
    e.l = autopad([], e.l)
    probs = check(e.l, name)
    acc_off = (va.hi + 3) // 4 * 4
    meta = dict(vgpr=acc_off + aa.hi, accum=acc_off, sgpr=sa.hi, lds=LDS_BYTES, block=256, grid=256)
    return e.l, meta, probs

if __name__ == '__main__':
    import sys
    text, meta, probs = gen_k0('p_kernel')
    print(meta, len(text), file=sys.stderr)
    for p in probs[:20]: print(p, file=sys.stderr)
    open(f'k0.s', 'w').write(wrap([('p_kernel', text, meta)]))
```

```python
from common import *

KSLOT = lambda i: i * 16384
VSLOT = lambda i: 65536 + i * 16384
XSLOT = lambda i: 131072 + i * 16384
LDS_BYTES = 163840
THRESH_LOG2 = 24
MF = 'v_mfma_f32_16x16x32_bf16'

def gen_k1(name, stamps=False, opt=None):
    opt = opt or {}
    ND = 4
    va = Alloc('v', 1, 256); aa = Alloc('a', 0, 256); sa = Alloc('s', 4, 100)
    S = [[[va(4, 4) for qb in range(4)] for kb in range(2)] for b in range(2)]
    P = [[va(4, 4) for qb in range(4)] for b in range(2)]
    MI = [va(4, 4) for qb in range(4)]
    spare = va(16, 4)
    qacc_base = S[0][0][0].base
    assert spare.base + 16 - qacc_base == 128
    QACC = [[R('v', qacc_base + 4 * (db * 4 + qb), 4) for qb in range(4)] for db in range(8)]
    Q = [[va(4, 4) for s_ in range(4)] for qb in range(4)]
    ONES = va(4, 4)
    kaddr = [va() for _ in range(4)]
    vaddr = [va() for _ in range(8)]
    voffK = [va() for _ in range(4)]
    voffV = [va() for _ in range(2)]
    vlane = va()
    t0, t1, t2, t3 = va(), va(), va(), va()
    MX = [va() for _ in range(4)]
    LV = [va() for _ in range(4)]
    O = [[aa(4, 4) for qb in range(4)] for db in range(8)]
    KF = [[aa(4, 4) for s_ in range(4)] for kb in range(2)]
    VF = [aa(4, 4) for _ in range(8)]
    LA = [aa(4, 4) for qb in range(4)]
    HB = R('a', O[0][0].base, 128)
    WF = [[KF[i >> 2][i & 3] for i in range(8)], VF]
    waddr = [R('v', Q[0][i].base, 1) for i in range(4)]
    wbase = [R('v', Q[1][i].base, 1) for i in range(4)]
    voffW = [R('v', Q[2][i].base, 1) for i in range(2)]
    voffH = R('v', Q[2][2].base, 1)
    srdK, srdV, srdW, srdH, srdO = sa(4), sa(4), sa(4), sa(4), sa(4)
    sptr = sa(8, 4)
    s_w, s_head, s_qb, s_t, s_u, s_koff, s_voff, s_m0b, s_cnt, s_mode, s_thr = [sa() for _ in range(11)]
    stamp = Stamps(stamps, sa)
    valu_sum = opt.get('valu_sum', False)

    pro = Stream(); e = pro
    e(f's_cmp_ge_u32 s2, 256')
    e(f's_cbranch_scc1 {name}_done')
    e(f's_load_dwordx4 {sptr[0:4]}, s[0:1], 8')
    e(f's_load_dwordx2 {sptr[4:6]}, s[0:1], 24')
    e(f's_load_dwordx2 {sptr[6:8]}, s[0:1], 96')
    e.ext(stamp(0))
    e(f'v_and_b32 {vlane}, 63, v0')
    e(f'v_lshrrev_b32 {t0}, 6, v0')
    e(f's_and_b32 {s_head}, s2, 7')
    e(f'v_readfirstlane_b32 {s_w}, {t0}')
    e(f's_lshl_b32 {s_head}, {s_head}, 2')
    e(f's_lshr_b32 {s_t}, s2, 3')
    e(f's_and_b32 {s_t}, {s_t}, 3')
    e(f's_add_u32 {s_head}, {s_head}, {s_t}')
    e(f's_lshr_b32 {s_qb}, s2, 5')
    e(f's_mov_b32 {s_mode}, 0')
    e(f's_mov_b32 {s_thr}, {hex((127 + THRESH_LOG2) << 23)}')
    e(f'v_lshrrev_b32 {t0}, 4, {vlane}')
    e(f'v_and_b32 {t1}, 15, {vlane}')
    e(f's_lshl_b32 {s_t}, {s_w}, 4')
    e(f'v_add_u32 {t2}, {s_t}, {t0}')
    for m in range(2):
        e(f'v_lshlrev_b32 {t3}, 1, {t0}')
        e(f'v_xor_b32 {t3}, {t3}, {t1}')
        if m: e(f'v_xor_b32 {t3}, 8, {t3}')
        e(f'v_lshlrev_b32 {t3}, 4, {t3}')
        e(f'v_lshl_add_u32 {voffW[m]}, {t2}, 13, {t3}')
        e(f'v_lshl_add_u32 {voffV[m]}, {t2}, 8, {t3}')
    e(f's_lshl_b32 {s_t}, {s_w}, 16')
    e(f'v_lshlrev_b32 {voffH}, 4, {vlane}')
    e(f'v_add_u32 {voffH}, {s_t}, {voffH}')
    e(f's_lshl_b32 {s_m0b}, {s_w}, 12')
    e(f's_waitcnt lgkmcnt(0)')
    e(f's_lshl_b32 {s_t}, {s_head}, 8')
    mk_srd(e, srdW, sptr[4:6], s_t, 511 * 8192 + 256)
    e(f's_lshl_b32 {s_t}, {s_qb}, 18')
    if WS_H: e(f's_add_u32 {s_t}, {s_t}, {WS_H}')
    mk_srd(e, srdH, sptr[6:8], s_t, 0x40000)

    vmq = []
    def dma_kv(which, slot_base, soff):
        out = [f's_add_u32 m0, {s_m0b}, {slot_base}']
        for m in range(ND):
            vo = voffK[m] if which == 'K' else voffV[m & 1]
            srd = srdK if which == 'K' else srdV
            out.append(f'buffer_load_dwordx4 {vo}, {srd}, {soff} offen offset:{m*1024} lds')
        return out
    def kv_const(which, tile):
        x = dma_kv(which, (KSLOT if which == 'K' else VSLOT)(tile), s_t)
        vmq.extend([(which, tile)] * ND)
        return [x[0], f's_mov_b32 {s_t}, {tile * 16384}'] + x[1:]
    WSLOT = [KSLOT(1), VSLOT(1), KSLOT(2), VSLOT(2), KSLOT(3), VSLOT(3), XSLOT(0), XSLOT(1)]
    def hbuf(tile, ks, qb):
        return HB.sub((((tile % 4) * 2 + ks) * 4 + qb) * 4, 4)
    def issue_w(tile):
        st = [f's_add_u32 m0, {s_m0b}, {WSLOT[tile]}']
        for m in range(ND):
            st.append(f's_mov_b32 {s_t}, {tile * 64 * 8192 + m * (32768 - 1024)}')
            st.append(f'buffer_load_dwordx4 {voffW[m & 1]}, {srdW}, {s_t} offen offset:{m*1024} lds')
            vmq.append(('W', tile))
        for qb in range(4):
            st.append(f's_mov_b32 {s_t}, {qb * 16384 + tile * 2048}')
            for ks in range(2):
                st.append(f'buffer_load_dwordx4 {hbuf(tile, ks, qb)}, {voffH}, {srdH}, {s_t} offen offset:{ks*1024}')
                vmq.append(('W', tile))
        return st
    def wait_for(tag):
        last = max(i for i, x in enumerate(vmq) if x == tag)
        return f's_waitcnt vmcnt({min(63, len(vmq) - 1 - last)})'

    for tile in range(4):
        e.ext(issue_w(tile))
    for m in range(4):
        e(f'v_xor_b32 {t3}, {t0}, {t1}')
        if m: e(f'v_xor_b32 {t3}, {4*m}, {t3}')
        e(f'v_lshlrev_b32 {t3}, 4, {t3}')
        e(f'v_lshl_add_u32 {voffK[m]}, {t2}, 8, {t3}')
    e(f'v_xor_b32 {t3}, {t0}, {t1}')
    e(f'v_lshlrev_b32 {t3}, 4, {t3}')
    e(f'v_lshl_add_u32 {kaddr[0]}, {t1}, 8, {t3}')
    for s_ in range(1, 4):
        e(f'v_xor_b32 {kaddr[s_]}, {s_ << 6}, {kaddr[0]}')
    e(f'v_lshrrev_b32 {t2}, 2, {vlane}')
    e(f'v_and_b32 {t3}, 7, {t2}')
    e(f'v_lshlrev_b32 {t3}, 1, {t3}')
    e(f'v_lshlrev_b32 {t2}, 8, {t2}')
    e(f'v_and_b32 {t1}, 3, {vlane}')
    e(f'v_xor_b32 {t0}, {t3}, {t1}')
    e(f'v_lshl_add_u32 {wbase[0]}, {t0}, 4, {t2}')
    for s_ in range(1, 4):
        e(f'v_xor_b32 {wbase[s_]}, {s_ << 6}, {wbase[0]}')
    e(f'v_lshrrev_b32 {t0}, 1, {t1}')
    e(f'v_xor_b32 {t0}, {t3}, {t0}')
    e(f'v_lshl_add_u32 {t2}, {t0}, 4, {t2}')
    e(f'v_and_b32 {t0}, 1, {t1}')
    e(f'v_lshl_add_u32 {t2}, {t0}, 3, {t2}')
    e(f'v_add_u32 {vaddr[0]}, {VSLOT(0)}, {t2}')
    for db in range(1, 8):
        e(f'v_xor_b32 {vaddr[db]}, {db << 5}, {vaddr[0]}')
    e(f'v_mov_b32 {t0}, 0x3f803f80')
    e(f'v_cmp_eq_u32 vcc, 0, {t1}')
    e(f's_lshl_b32 {s_t}, {s_head}, 19')
    mk_srd(e, srdK, sptr[0:2], s_t, 0x80000)
    for i in range(4):
        e(f'v_cndmask_b32 {ONES[i]}, 0, {t0}, vcc')
    mk_srd(e, srdV, sptr[2:4], s_t, 0x80000)
    e(f's_lshl_b32 {s_t}, {s_qb}, 21')
    e(f's_lshl_b32 {s_u}, {s_head}, 12')
    e(f's_add_u32 {s_t}, {s_t}, {s_u}')
    e(f's_add_u32 {s_t}, {s_t}, {WS_O}')
    mk_srd(e, srdO, sptr[6:8], s_t, 15 * 131072 + 4096)

    def w_reads(tile, ks):
        out = []
        for db in range(8):
            for u in range(2):
                out.append(f'ds_read_b64_tr_b16 {WF[ks][db].sub(2*u, 2)}, {waddr[db >> 1]} offset:{(32*ks + 16*u) * 256 + 8 * (db & 1)}')
        return out
    def set_waddr(tile):
        return [f'v_add_u32 {waddr[i]}, {WSLOT[tile]}, {wbase[i]}' for i in range(4)]
    e.ext(set_waddr(0))
    e(wait_for(('W', 0)))
    e('s_barrier')
    e.ext(stamp(1))
    e.ext(w_reads(0, 0))
    snake = lambda i, n=4: list(range(n)) if i % 2 == 0 else list(range(n - 1, -1, -1))
    for tile in range(8):
        for ks in range(2):
            mf = []
            for db in range(8):
                for qb in snake(db):
                    c = '0' if (tile == 0 and ks == 0) else QACC[db][qb]
                    mf.append(f'{MF} {QACC[db][qb]}, {WF[ks][db]}, {hbuf(tile, ks, qb)}, {c}')
            gaps = [[] for _ in mf]
            e('s_waitcnt lgkmcnt(0)')
            if ks == 0:
                nxt = w_reads(tile, 1)
                for i, x in enumerate(nxt): gaps[i].append(x)
                if tile == 0: iss = kv_const('K', 0)
                elif tile <= 4: iss = issue_w(tile + 3)
                elif tile == 5: iss = kv_const('V', 0) + kv_const('K', 1)
                elif tile == 6: iss = kv_const('V', 1) + kv_const('K', 2)
                else: iss = kv_const('V', 2) + kv_const('K', 3)
                g = 16
                for x in iss:
                    gaps[min(g, 31)].append(x)
                    if x.startswith('buffer'): g += 1
            else:
                if tile < 7:
                    gaps[0] += set_waddr(tile + 1)[:2]; gaps[1] += set_waddr(tile + 1)[2:]
                    gaps[2] += [wait_for(('W', tile + 1)), 's_barrier']
                    for i, x in enumerate(w_reads(tile + 1, 0)): gaps[4 + i].append(x)
                else:
                    gaps[2] += [wait_for(('K', 0)), 's_barrier']
            for m, g in zip(mf, gaps):
                e(m); e.ext(g)
    e.ext(stamp(2))

    def k_reads(slot, sub):
        return [f'ds_read_b128 {KF[kb][s_]}, {kaddr[s_]} offset:{KSLOT(slot) + sub * 8192 + kb * 4096}' for kb in range(2) for s_ in range(4)]
    def v_reads(slot, sub, dbs):
        return [f'ds_read_b64_tr_b16 {VF[db].sub(2*u, 2)}, {vaddr[db]} offset:{slot * 16384 + sub * 8192 + u * 4096}' for db in dbs for u in range(2)]
    def qk_mfmas(buf, cinit):
        out = []
        for kb in range(2):
            for s_ in range(4):
                for qb in range(4):
                    c = S[buf][kb][qb] if s_ else (MI[qb] if cinit else '0')
                    out.append(f'{MF} {S[buf][kb][qb]}, {KF[kb][s_]}, {Q[qb][s_]}, {c}')
        return out
    def pv_mfmas(buf):
        out = []
        if not valu_sum:
            for qb in snake(1):
                out.append(f'{MF} {LA[qb]}, {ONES}, {P[buf][qb]}, {LA[qb]}')
        for db in range(8):
            for qb in snake(db):
                out.append(f'{MF} {O[db][qb]}, {VF[db]}, {P[buf][qb]}, {O[db][qb]}')
        return out
    def sm_elems(buf):
        return [(kb, qb, r) for kb in range(2) for qb in range(4) for r in range(4)]
    def op_exp(buf, el):
        kb, qb, r = el; x = S[buf][kb][qb][r]; return f'v_exp_f32 {x}, {x}'
    def op_cvt(buf, el):
        kb, qb, r = el; x = S[buf][kb][qb]
        return f'v_cvt_pk_bf16_f32 {P[buf][qb][2*kb + (r >> 1)]}, {x[r-1]}, {x[r]}'
    def op_add(buf, el):
        kb, qb, r = el; return f'v_add_f32 {LV[qb]}, {LV[qb]}, {S[buf][kb][qb][r]}'

    def rowmax(st, buf):
        for kb in range(2):
            for r in (0, 2):
                for qb in range(4):
                    x = S[buf][kb][qb]
                    st(f'v_max3_f32 {MX[qb]}, {x[r]}, {x[r+1]}, {MX[qb]}')
    def xreduce(st, regs, op):
        tm = [t0, t1, t2, t3]
        for sw in ('v_permlane32_swap_b32', 'v_permlane16_swap_b32'):
            for qb in range(4): st(f'v_mov_b32 {tm[qb]}, {regs[qb]}')
            st('s_nop 0')
            for qb in range(4): st(f'{sw} {tm[qb]}, {regs[qb]}')
            for qb in range(4): st(f'{op} {regs[qb]}, {tm[qb]}, {regs[qb]}')
    def finish_max(st):
        xreduce(st, MX, 'v_max_f32')
        for qb in range(4):
            for r in range(4):
                st(f'v_sub_f32 {MI[qb][r]}, 0, {MX[qb]}')

    e('s_nop 3')
    e.ext(k_reads(0, 0))
    for s_ in range(4):
        for qb in range(4):
            for b in range(2):
                for j in range(2):
                    x = QACC[2*s_ + b][qb]
                    e(f'v_cvt_pk_bf16_f32 {Q[qb][s_][2*b + j]}, {x[2*j]}, {x[2*j+1]}')
    for qb in range(4): e(f'v_mov_b32 {MX[qb]}, 0xff800000')
    e('s_waitcnt lgkmcnt(0)')
    zero_o = [f'v_accvgpr_write_b32 {O[db][qb][r]}, 0' for db in range(8) for qb in range(4) for r in range(4)]
    zero_o += [f'v_accvgpr_write_b32 {LA[qb][r]}, 0' for qb in range(4) for r in range(4)]
    zero_o += [f'v_mov_b32 {LV[qb]}, 0' for qb in range(4)]
    zi = 0
    for m in qk_mfmas(0, False):
        e(m); e.ext(zero_o[zi:zi + 2]); zi += 2
    e.ext(k_reads(0, 1))
    e.ext(zero_o[zi:])
    rowmax(e, 0)
    finish_max(e)
    e(f'{name}_start:')
    e(wait_for(('K', 1)) + ' lgkmcnt(0)')
    e('s_barrier')
    e.ext(v_reads(0, 0, range(4)))
    for kb in range(2):
        for qb in range(4):
            for r in range(4):
                e(f'v_add_f32 {S[0][kb][qb][r]}, {S[0][kb][qb][r]}, {MI[qb][r]}')

    NA = 32; NB = 32 if valu_sum else 36; NS = NA + NB
    X = opt.get('X', 22)
    els = sm_elems(0)
    exp_pos = [X + 2 * i + (opt.get('skew', 2) if i >= 16 else 0) for i in range(32)]
    sched = []
    for i in range(32):
        sched.append((exp_pos[i], 'exp', i))
        if valu_sum: sched.append((exp_pos[i] + 1, 'add', i))
        if i & 1: sched.append((exp_pos[i] + opt.get('cvtlag', 1), 'cvt', i))
    assert max(p for p, _, _ in sched) < NS + NA - 1
    fn = dict(exp=op_exp, cvt=op_cvt, add=op_add)
    for p, kind, i in sorted(sched):
        if p < NS:
            e(fn[kind](0, els[i]))
            if kind == 'exp': e('s_nop 0')
    e(f's_mov_b32 {s_voff}, {3 * 16384}')
    e(f's_mov_b32 {s_koff}, {4 * 16384}')
    e(f's_mov_b32 {s_cnt}, 0')
    e.ext(stamp(3))

    def build(last):
        nt = 8
        mf, info = [], []
        for t in range(nt):
            A = [] if (last and t == nt - 1) else qk_mfmas((t + 1) & 1, True)
            a0 = len(mf); mf += A; b0 = len(mf); mf += pv_mfmas(t & 1)
            info.append((a0, b0))
        n = len(mf)
        mem = [[] for _ in range(n)]; alu = [[] for _ in range(n)]; pre = [[] for _ in range(n)]
        for t in range(nt):
            a0, b0 = info[t]
            T = t >> 1; sub = t & 1
            skipA = last and t == nt - 1
            vr = v_reads(T, sub, range(4, 8))
            if skipA: pre[b0] += vr
            else:
                for i, x in enumerate(vr): mem[a0 + 1 + 2 * i].append(x)
            pre[b0].append('s_waitcnt lgkmcnt(0)')
            if not (last and t >= nt - 2):
                for i, x in enumerate(k_reads((T + 1) % 4, sub)): mem[b0 + 1 + 2 * i].append(x)
            pw = b0 + NB - 17
            w = 's_waitcnt lgkmcnt(0)'
            if sub == 1 and not (last and t == nt - 1):
                vm = (4 * ND) if not last else (3 * ND, ND, 0)[T]
                mem[pw] += [f's_waitcnt vmcnt({vm}) lgkmcnt(0)', 's_barrier']
            else:
                mem[pw].append(w)
            if not (last and t == nt - 1):
                t1_ = t + 1
                for i, x in enumerate(v_reads((t1_ >> 1) % 4, t1_ & 1, range(4))): mem[pw + 2 + 2 * i].append(x)
            if not last or t == 0:
                if sub == 0: d = dma_kv('V', VSLOT((T + 3) % 4), s_voff) + [f's_add_u32 {s_voff}, {s_voff}, 16384']
                else: d = dma_kv('K', KSLOT(T % 4), s_koff) + [f's_add_u32 {s_koff}, {s_koff}, 16384']
                dpos = opt.get('dpos', [17, 19, 23, 27, 31, 31])
                for p, x in zip(dpos, d): mem[a0 + p].append(x)
        for t in range(-1, nt):
            if last and t == nt - 1: continue
            base = info[t][0] if t >= 0 else -NS
            for p, kind, i in sorted(sched):
                g = base + p
                op = fn[kind]((t + 1) & 1, els[i])
                if last and t == nt - 2 and g >= info[nt - 1][1]:
                    pre[info[nt - 1][1]].insert(-1, op)
                elif 0 <= g < n: alu[g].append(op)
        out = Stream()
        for i in range(n):
            out.ext(pre[i]); out(mf[i]); out.ext(mem[i]); out.ext(alu[i])
        return out
    loop = build(False)
    lastb = build(True)
    lastb.l = autopad(loop.l, lastb.l)
    lp = Stream()
    if opt.get('align'): lp(f'.p2align {opt["align"]}')
    lp(f'{name}_loop:')
    lp.ext(loop.l)
    lp(f's_add_u32 {s_cnt}, {s_cnt}, 1')
    lp(f's_cmp_lt_u32 {s_cnt}, 7')
    lp(f's_cbranch_scc1 {name}_loop')

    epi = Stream(); e = epi
    e.ext(stamp(4))
    if valu_sum:
        xreduce(e, LV, 'v_add_f32')
    else:
        for qb in range(4): e(f'v_accvgpr_read_b32 {LV[qb]}, {LA[qb][0]}')
    e(f'v_mov_b32 {t2}, {s_thr}')
    e(f'v_cmp_nle_f32 vcc, {LV[0]}, {t2}')
    for qb in range(1, 4):
        e(f'v_cmp_nle_f32 {sptr[0:2]}, {LV[qb]}, {t2}')
        e('s_nop 0')
        e(f's_or_b64 vcc, vcc, {sptr[0:2]}')
    e(f's_cmp_lg_u64 vcc, 0')
    e(f's_cselect_b32 {s_t}, 1, 0')
    e(f'v_mov_b32 {t2}, {s_t}')
    e(f's_lshl_b32 {s_u}, {s_w}, 2')
    e(f'v_mov_b32 {t3}, {s_u}')
    e(f'v_add_u32 {t3}, {XSLOT(0)}, {t3}')
    e(f'ds_write_b32 {t3}, {t2}')
    e(f'v_mov_b32 {t3}, {XSLOT(0)}')
    e('s_waitcnt lgkmcnt(0) vmcnt(0)')
    e('s_barrier')
    flag = spare
    e(f'ds_read_b128 {flag[0:4]}, {t3}')
    for qb in range(4):
        e(f'v_rcp_f32 {LV[qb]}, {LV[qb]}')
    e('s_waitcnt lgkmcnt(0)')
    e(f'v_or3_b32 {t2}, {flag[0]}, {flag[1]}, {flag[2]}')
    e(f'v_or_b32 {t2}, {t2}, {flag[3]}')
    e('s_nop 0')
    e(f'v_readfirstlane_b32 {s_t}, {t2}')
    e('s_nop 1')
    e(f's_andn2_b32 {s_t}, {s_t}, {s_mode}')
    e(f's_cmp_lg_u32 {s_t}, 0')
    e(f's_cbranch_scc1 {name}_fallback')
    e(f'v_lshlrev_b32 {t3}, 4, {vlane}')
    e(f's_lshl_b32 {s_t}, {s_w}, 19')
    e(f'v_add_u32 {t3}, {s_t}, {t3}')
    k = 0
    for qb in range(4):
        e(f's_mov_b32 {s_t}, {qb * 131072}')
        for ks in range(4):
            x = R('v', qacc_base + 12 * (k % 4), 12); k += 1
            for j in range(8):
                e(f'v_accvgpr_read_b32 {x[j]}, {O[2*ks + (j >> 2)][qb][j & 3]}')
            for j in range(8):
                e(f'v_mul_f32 {x[j]}, {x[j]}, {LV[qb]}')
            for j in range(4):
                e(f'v_cvt_pk_bf16_f32 {x[8 + j]}, {x[2*j]}, {x[2*j+1]}')
            e(f'buffer_store_dwordx4 {x[8:12]}, {t3}, {srdO}, {s_t} offen offset:{ks * 1024}{opt.get("ost", "")}')
    if stamps:
        e('s_waitcnt vmcnt(0)')
        e.ext(stamp(5))
        stamp.dump(e, sptr[6:8], s_w, s_t, S[0][0][0], t3)
    e(f'{name}_done:')
    e('s_endpgm')
    epi.l = autopad(lastb.l, epi.l)

    fb = Stream(); e = fb
    e(f'{name}_fallback:')
    e(f's_mov_b32 {s_mode}, 1')
    for qb in range(4): e(f'v_mov_b32 {MX[qb]}, 0xff800000')
    e(f's_mov_b32 {s_koff}, {31 * 16384}')
    e(f'{name}_fbloop:')
    e('s_barrier')
    x = dma_kv('K', KSLOT(0), s_koff)
    e(x[0]); e('s_nop 0'); e.ext(x[1:])
    e('s_waitcnt vmcnt(0)')
    e('s_barrier')
    for sub in (1, 0):
        e.ext(k_reads(0, sub))
        e('s_waitcnt lgkmcnt(0)')
        e.ext(qk_mfmas(0, False))
        e('s_nop 7')
        rowmax(e, 0)
    e(f's_sub_u32 {s_koff}, {s_koff}, 16384')
    e(f's_cbranch_scc0 {name}_fbloop')
    finish_max(e)
    e.ext(k_reads(0, 1))
    e.ext(zero_o)
    for which, tile in (('V', 0), ('K', 1), ('V', 1), ('K', 2), ('V', 2), ('K', 3)):
        e.ext(kv_const(which, tile))
    e(f's_branch {name}_start')

    text = pro.l + lp.l + lastb.l + epi.l + fb.l
    i_start = pro.l.index(f'{name}_start:')
    tr1 = pro.l + lp.l + lp.l + lastb.l + epi.l
    i_fb = [i for i, x in enumerate(epi.l) if 'fallback' in x][0]
    i_fl = fb.l.index(f'{name}_fbloop:')
    i_fe = [i for i, x in enumerate(fb.l) if 's_cbranch_scc0' in x][0]
    tr2 = lastb.l + epi.l[:i_fb + 1] + fb.l[:i_fe + 1] + fb.l[i_fl:] + pro.l[i_start:] + lp.l
    probs = check(tr1, name) + check(tr2, name + '/fb')
    acc_off = (va.hi + 3) // 4 * 4
    meta = dict(vgpr=acc_off + aa.hi, accum=acc_off, sgpr=sa.hi, lds=LDS_BYTES, block=256, grid=256)
    return text, meta, probs

if __name__ == '__main__':
    import sys
    cfgs = {'base': {}, 'vsum': dict(valu_sum=True, skew=0),
      'd2': dict(dpos=[17, 21, 23, 27, 31, 31]), 'd3': dict(dpos=[17, 20, 21, 23, 27, 31]),
      'al6': dict(align=6), 'sc1': dict(ost=' sc1'), 'nt': dict(ost=' nt')}
    for n, o in cfgs.items():
        text, meta, probs = gen_k1('attn_kernel', stamps=True, opt=o)
        print(n, meta, len(text), file=sys.stderr)
        probs += gen_k1('attn_kernel', stamps=False, opt=o)[2]
        for p in probs[:20]: print(p, file=sys.stderr)
        open(f'k1b_{n}.s', 'w').write(wrap([('attn_kernel', text, meta)]))
    print(' '.join(f'k1b_{n}.s' for n in cfgs))
```

```python
from common import *

def gen_k2(name, mode, stamps=False, opt=None):
    opt = opt or {}
    D = opt.get('D', 5)
    KS = 128 if mode == 'o' else 43
    NST = 32 if mode == 'o' else 11
    va = Alloc('v', 1, 256); aa = Alloc('a', 0, 256); sa = Alloc('s', 4, 100)
    ACC = [[va(4, 4) for tb in range(4)] for nb in range(4)]
    BF = [[aa(4, 4) for tb in range(4)] for d in range(D)]
    AF = [[aa(4, 4) for nb in range(4)] for d in range(2)]
    RX = va(8, 4)
    GV = va(16, 4)
    G2 = va(16, 4) if mode == 'o' else None
    RED = va(48, 4)
    voffA, voffB, vlane = va(), va(), va()
    aaddr = [va() for _ in range(4)]
    t0, t1, t2, t3 = va(), va(), va(), va()
    srdA, srdB, srdR, srdM, srdO1, srdO2, srdS = [sa(4) for _ in range(7)]
    sptr = sa(8, 4)
    s_w, s_rb, s_cb, s_t, s_u, s_m0b, s_ka, s_kb = [sa() for _ in range(8)]
    stamp = Stamps(stamps, sa)
    LDS_BYTES = max(4 * D * 4096, 4 * 12 * 1024, opt.get('minlds', 81920 + 1024))

    e = Stream()
    e('s_cmp_ge_u32 s2, 256')
    e(f's_cbranch_scc1 {name}_done')
    e(f's_load_dwordx2 {sptr[0:2]}, s[0:1], {32 if mode == "o" else 56}')
    e(f's_load_dwordx2 {sptr[2:4]}, s[0:1], {0 if mode == "o" else 80}')
    e(f's_load_dwordx2 {sptr[4:6]}, s[0:1], 96')
    e.ext(stamp(0))
    e(f'v_and_b32 {vlane}, 63, v0')
    e(f'v_lshrrev_b32 {t0}, 6, v0')
    e(f's_and_b32 {s_rb}, s2, 7')
    e(f'v_readfirstlane_b32 {s_w}, {t0}')
    e(f's_lshl_b32 {s_rb}, {s_rb}, 2')
    e(f's_lshr_b32 {s_t}, s2, 6')
    e(f's_add_u32 {s_rb}, {s_rb}, {s_t}')
    e(f's_bfe_u32 {s_cb}, s2, 0x30003')
    e(f'v_lshrrev_b32 {t0}, 3, {vlane}')
    e(f'v_and_b32 {t1}, 6, {t0}')
    e(f'v_and_b32 {t2}, 7, {vlane}')
    e(f'v_xor_b32 {t1}, {t1}, {t2}')
    e(f'v_lshlrev_b32 {t1}, 4, {t1}')
    e(f'v_lshl_add_u32 {voffA}, {t0}, 10, {t1}')
    e(f'v_lshlrev_b32 {voffB}, 4, {vlane}')
    e(f's_mul_i32 {s_m0b}, {s_w}, {D * 4096}')
    e(f's_mul_i32 {s_ka}, {s_w}, {NST * 32 * 1024}')
    e(f's_mul_i32 {s_kb}, {s_w}, {NST * 1024}')
    e('s_waitcnt lgkmcnt(0)')
    e(f's_lshl_b32 {s_t}, {s_cb}, 7')
    mk_srd(e, srdA, sptr[0:2], s_t, (KS * 32 - 1) * 1024 + 128)
    e(f's_mul_i32 {s_t}, {s_rb}, {4 * KS * 1024}')
    e(f's_add_u32 {s_t}, {s_t}, {WS_O if mode == "o" else WS_F}')
    mk_srd(e, srdB, sptr[4:6], s_t, 4 * KS * 1024)

    vmq = []
    def issue(st):
        out = [f's_add_u32 m0, {s_m0b}, {(st % D) * 4096}']
        for m in range(4):
            out.append(f's_add_u32 {s_t}, {s_ka}, {st * 32768 + m * (8192 - 1024)}')
            out.append(f'buffer_load_dwordx4 {voffA}, {srdA}, {s_t} offen offset:{m*1024} lds')
            vmq.append(st)
        for tb in range(4):
            out.append(f's_add_u32 {s_t}, {s_kb}, {tb * KS * 1024 + st * 1024}')
            out.append(f'buffer_load_dwordx4 {BF[st % D][tb]}, {voffB}, {srdB}, {s_t} offen')
            vmq.append(st)
        return out
    def wait_for(tag):
        last = max(i for i, x in enumerate(vmq) if x == tag)
        return f's_waitcnt vmcnt({min(63, len(vmq) - 1 - last)})'
    for st in range(min(D, NST) - 1):
        e.ext(issue(st))
    e(f'v_lshrrev_b32 {t0}, 2, {vlane}')
    e(f'v_and_b32 {t1}, 6, {t0}')
    e(f'v_bfe_u32 {t2}, {vlane}, 1, 1')
    e(f'v_xor_b32 {t1}, {t1}, {t2}')
    e(f'v_lshlrev_b32 {t1}, 4, {t1}')
    e(f'v_lshl_add_u32 {t1}, {t0}, 7, {t1}')
    e(f'v_and_b32 {t2}, 1, {vlane}')
    e(f'v_lshl_add_u32 {t1}, {t2}, 3, {t1}')
    e(f'v_add_u32 {aaddr[0]}, {s_m0b}, {t1}')
    for nb in range(1, 4):
        e(f'v_xor_b32 {aaddr[nb]}, {nb << 5}, {aaddr[0]}')
    e(f'v_and_b32 {t0}, 15, {vlane}')
    e(f'v_lshrrev_b32 {t1}, 4, {vlane}')
    e(f's_lshl_b32 {s_t}, {s_cb}, 8')
    e(f's_add_u32 {s_t}, {s_t}, {WS_MOD}')
    mk_srd(e, srdM, sptr[4:6], s_t, 6144)
    e(f'v_lshlrev_b32 {t2}, 4, {t1}')
    for nb in range(4):
        e(f'buffer_load_dwordx4 {GV[4*nb:4*nb+4]}, {t2}, {srdM}, 0 offen offset:{(0 if mode == "o" else 2048) + nb * 64}')
        vmq.append('E')
    e(f's_lshl_b32 {s_t}, {s_rb}, 16')
    e(f's_lshl_b32 {s_u}, {s_cb}, 7')
    e(f's_add_u32 {s_t}, {s_t}, {s_u}')
    mk_srd(e, srdR, sptr[2:4], s_t, 63 * 1024 + 128)
    e(f's_lshl_b32 {s_t}, {s_w}, 14')
    e(f'v_lshlrev_b32 {t3}, 10, {t0}')
    e(f'v_lshl_add_u32 {t3}, {t1}, 3, {t3}')
    e(f'v_add_u32 {t3}, {s_t}, {t3}')
    e(f's_lshl_b32 {s_t}, {s_rb}, 16')
    e(f's_lshl_b32 {s_u}, {s_w}, 14')
    e(f's_add_u32 {s_t}, {s_t}, {s_u}')
    e(f's_lshl_b32 {s_u}, {s_cb}, 11')
    e(f's_add_u32 {s_t}, {s_t}, {s_u}')
    e(f's_add_u32 {s_u}, {s_t}, {WS_X1}')
    mk_srd(e, srdO1, sptr[4:6], s_u, 2048)
    if mode == 'o':
        e(f's_add_u32 {s_u}, {s_t}, {WS_Y}')
        mk_srd(e, srdO2, sptr[4:6], s_u, 2048)
        e(f's_mov_b32 {s_t}, 4096')
        for nb in range(4):
            e(f'buffer_load_dwordx4 {G2[4*nb:4*nb+4]}, {t2}, {srdM}, {s_t} offen offset:{nb * 64}')
            e(f'buffer_load_dwordx2 {RX[2*nb:2*nb+2]}, {t3}, {srdR}, 0 offen offset:{nb * 32}')
            vmq.extend(['E', 'E'])
        e(f's_lshl_b32 {s_t}, {s_rb}, 12')
        e(f's_lshl_b32 {s_u}, {s_w}, 10')
        e(f's_add_u32 {s_t}, {s_t}, {s_u}')
        e(f's_lshl_b32 {s_u}, {s_cb}, 3')
        e(f's_add_u32 {s_t}, {s_t}, {s_u}')
        e(f's_add_u32 {s_t}, {s_t}, {WS_ST}')
        mk_srd(e, srdS, sptr[4:6], s_t, 15 * 64 + 8)
    else:
        for v_ in range(2):
            e(f'buffer_load_dwordx4 {RX[4*v_:4*v_+4]}, {voffB}, {srdO1}, 0 offen offset:{v_ * 1024}')
            vmq.append('E')

    def a_reads(st):
        return [f'ds_read_b64_tr_b16 {AF[st & 1][nb].sub(2*u, 2)}, {aaddr[nb]} offset:{(st % D) * 4096 + u * 2048}' for nb in range(4) for u in range(2)]
    snake = lambda i, n=4: list(range(n)) if i % 2 == 0 else list(range(n - 1, -1, -1))
    e(wait_for(0))
    e.ext(stamp(1))
    e.ext(a_reads(0))
    for st in range(NST):
        mf = []
        for nb in range(4):
            for tb in snake(nb):
                c = '0' if st == 0 else ACC[nb][tb]
                mf.append(f'{MF} {ACC[nb][tb]}, {AF[st & 1][nb]}, {BF[st % D][tb]}, {c}')
        if st + D - 1 < NST:
            e.ext(issue(st + D - 1))
        e('s_waitcnt lgkmcnt(0)')
        gaps = [[] for _ in mf]
        if st + 1 < NST:
            gaps[3].append(wait_for(st + 1))
            for i, x in enumerate(a_reads(st + 1)): gaps[4 + i].append(x)
        if mode == 'f' and st == NST - 1:
            e(f's_cmp_eq_u32 {s_w}, 3')
            e(f's_cbranch_scc1 {name}_skip')
        for m, g in zip(mf, gaps):
            e(m); e.ext(g)
    if mode == 'f': e(f'{name}_skip:')
    e.ext(stamp(2))
    e('s_barrier')
    e('s_nop 7')
    for j in range(1, 4):
        pass
    for w in range(4):
        e(f's_cmp_lg_u32 {s_w}, {w}')
        e(f's_cbranch_scc1 {name}_w{w}')
        for j in range(1, 4):
            dst = (w + j) & 3
            for nb in range(4):
                e(f'ds_write_b128 {voffB}, {ACC[nb][dst]} offset:{(dst * 12 + (j - 1) * 4 + nb) * 1024}')
        if w:
            for nb in range(4):
                for r in range(4):
                    e(f'v_mov_b32 {ACC[nb][0][r]}, {ACC[nb][w][r]}')
        e(f'{name}_w{w}:')
    e(f's_mul_i32 {s_t}, {s_w}, {12 * 1024}')
    e(f'v_add_u32 {t2}, {s_t}, {voffB}')
    e('s_waitcnt lgkmcnt(0)')
    e('s_barrier')
    for i in range(12):
        e(f'ds_read_b128 {RED[4*i:4*i+4]}, {t2} offset:{i * 1024}')
    Z = [ACC[nb][0][r] for nb in range(4) for r in range(4)]
    X = [ACC[nb][1][r] for nb in range(4) for r in range(4)]
    Y = [ACC[nb][2][r] for nb in range(4) for r in range(4)]
    PK = R('v', ACC[0][3].base, 4), R('v', ACC[1][3].base, 4), R('v', ACC[2][3].base, 4), R('v', ACC[3][3].base, 4)
    e(wait_for('E'))
    for i in range(8):
        e(f'v_lshlrev_b32 {X[2*i]}, 16, {RX[i]}')
        e(f'v_and_b32 {X[2*i+1]}, 0xffff0000, {RX[i]}')
    for j in range(3):
        e(f's_waitcnt lgkmcnt({8 - 4 * j})')
        for i in range(16):
            e(f'v_add_f32 {Z[i]}, {Z[i]}, {RED[16*j + i]}')
    for i in range(16):
        e(f'v_fma_f32 {X[i]}, {GV[i]}, {Z[i]}, {X[i]}')
    for i in range(8):
        e(f'v_cvt_pk_bf16_f32 {PK[i >> 2][i & 3]}, {X[2*i]}, {X[2*i+1]}')
    st_ = opt.get('st', '')
    if mode == 'f':
        for nb in range(4):
            e(f'buffer_store_dwordx2 {PK[nb >> 1].sub(2 * (nb & 1), 2)}, {t3}, {srdR}, 0 offen offset:{nb * 32}{st_}')
    else:
        for v_ in range(2):
            e(f'buffer_store_dwordx4 {PK[v_]}, {voffB}, {srdO1}, 0 offen offset:{v_ * 1024}{st_}')
        for i in range(8):
            e(f'v_lshlrev_b32 {X[2*i]}, 16, {PK[i >> 2][i & 3]}')
            e(f'v_and_b32 {X[2*i+1]}, 0xffff0000, {PK[i >> 2][i & 3]}')
        for i in range(16):
            e(f'v_mul_f32 {Y[i]}, {X[i]}, {G2[i]}')
        for i in range(8):
            e(f'v_cvt_pk_bf16_f32 {PK[2 + (i >> 2)][i & 3]}, {Y[2*i]}, {Y[2*i+1]}')
        for v_ in range(2):
            e(f'buffer_store_dwordx4 {PK[2 + v_]}, {voffB}, {srdO2}, 0 offen offset:{v_ * 1024}{st_}')
        sm, m2 = RED[0], RED[1]
        def xsum(r):
            for sw in ('v_permlane32_swap_b32', 'v_permlane16_swap_b32'):
                e(f'v_mov_b32 {t0}, {r}')
                e('s_nop 1')
                e(f'{sw} {t0}, {r}')
                e(f'v_add_f32 {r}, {t0}, {r}')
        e(f'v_add_f32 {sm}, {X[0]}, {X[1]}')
        for i in range(2, 16): e(f'v_add_f32 {sm}, {sm}, {X[i]}')
        xsum(sm)
        e(f'v_mul_f32 {t1}, 0x3c800000, {sm}')
        for i in range(16): e(f'v_sub_f32 {X[i]}, {X[i]}, {t1}')
        e(f'v_mul_f32 {m2}, {X[0]}, {X[0]}')
        for i in range(1, 16): e(f'v_fmac_f32 {m2}, {X[i]}, {X[i]}')
        xsum(m2)
        e(f'v_lshlrev_b32 {t2}, 6, {vlane}')
        e(f'buffer_store_dwordx2 {RED[0:2]}, {t2}, {srdS}, 0 offen{st_}')
    if stamps:
        e('s_waitcnt vmcnt(0)')
        e.ext(stamp(3)); e.ext(stamp(4)); e.ext(stamp(5))
        stamp.dump(e, sptr[4:6], s_w, s_t, RED, t2, base=opt.get('stampbase', 0))
    e(f'{name}_done:')
    e('s_endpgm')
    e.l = autopad([], e.l)
    probs = check(e.l, name)
    acc_off = (va.hi + 3) // 4 * 4
    meta = dict(vgpr=acc_off + aa.hi, accum=acc_off, sgpr=sa.hi, lds=LDS_BYTES, block=256, grid=256)
    return e.l, meta, probs

if __name__ == '__main__':
    import sys
    for mode in 'of':
        text, meta, probs = gen_k2('g_kernel', mode, stamps=False)
        print(mode, meta, len(text), file=sys.stderr)
        for p in probs[:20]: print(p, file=sys.stderr)
        open(f'k2_{mode}.s', 'w').write(wrap([('g_kernel', text, meta)]))
```

```python
from common import *

def gen_k3(name, stamps=False, opt=None):
    opt = opt or {}
    va = Alloc('v', 1, 256); aa = Alloc('a', 0, 256); sa = Alloc('s', 4, 100)
    ACC = [[va(4, 4) for tb in range(5)] for i in range(3)]
    STT = [va(4, 4) for tb in range(4)]
    U = va(12, 4); T = va(12, 4); TM = va(16, 4); PK = va(8, 4)
    AF = [[aa(4, 4) for i in range(3)] for d in range(2)]
    BF = [[aa(4, 4) for tb in range(5)] for d in range(2)]
    voffA = [va() for _ in range(3)]
    abase = [va() for _ in range(3)]
    aaddr = [va() for _ in range(3)]
    baddr, gaddr, vlane, vl16 = va(), va(), va(), va()
    MU = [va() for _ in range(4)]; RS = [va() for _ in range(4)]
    t0, t1, t2, t3 = va(), va(), va(), va()
    srdA, srdB, srdG, srdS, srdF = [sa(4) for _ in range(5)]
    sptr = sa(4, 4)
    s_w, s_rb, s_nb0, s_t, s_u, s_ma, s_mb, s_ka, s_kb = [sa() for _ in range(9)]
    stamp = Stamps(stamps, sa)
    SLOT = 32768; GSB = 4 * SLOT
    LDS_BYTES = GSB + 16384

    e = Stream()
    e('s_cmp_ge_u32 s2, 256')
    e(f's_cbranch_scc1 {name}_done')
    e(f's_load_dwordx2 {sptr[0:2]}, s[0:1], 48')
    e(f's_load_dwordx2 {sptr[2:4]}, s[0:1], 96')
    e.ext(stamp(0))
    e(f'v_and_b32 {vlane}, 63, v0')
    e(f'v_lshrrev_b32 {t0}, 6, v0')
    e(f's_and_b32 {s_rb}, s2, 7')
    e(f'v_readfirstlane_b32 {s_w}, {t0}')
    e(f's_lshl_b32 {s_rb}, {s_rb}, 2')
    e(f's_lshr_b32 {s_t}, s2, 6')
    e(f's_add_u32 {s_rb}, {s_rb}, {s_t}')
    e(f's_bfe_u32 {s_t}, s2, 0x30003')
    e(f's_mul_i32 {s_nb0}, {s_t}, 677')
    e(f's_lshr_b32 {s_nb0}, {s_nb0}, 6')
    assert [(n * 677) >> 6 for n in range(8)] == [n * 74 // 7 for n in range(8)]
    for m in range(3):
        e(f'v_add_u32 {t0}, {64 * m}, {vlane}')
        e(f'v_mul_u32_u24 {t1}, 2731, {t0}')
        e(f'v_lshrrev_b32 {t1}, 16, {t1}')
        e(f'v_mul_u32_u24 {t2}, 24, {t1}')
        e(f'v_sub_u32 {t0}, {t0}, {t2}')
        e(f'v_and_b32 {t2}, 6, {t1}')
        e(f'v_xor_b32 {t0}, {t0}, {t2}')
        e(f'v_mul_u32_u24 {t1}, 2752, {t1}')
        e(f'v_lshl_add_u32 {voffA[m]}, {t0}, 4, {t1}')
        if m: e(f'v_subrev_u32 {voffA[m]}, {1024 * m}, {voffA[m]}')
    assert all((q * 2731) >> 16 == q // 24 for q in range(192))
    e(f'v_lshlrev_b32 {vl16}, 4, {vlane}')
    e(f's_mul_i32 {s_ma}, {s_w}, 6144')
    e(f's_lshl_b32 {s_mb}, {s_w}, 11')
    e(f's_mul_i32 {s_ka}, {s_w}, {16 * 2752}')
    e(f's_lshl_b32 {s_kb}, {s_w}, 14')
    e('s_waitcnt lgkmcnt(0)')
    e(f's_lshl_b32 {s_t}, {s_nb0}, 5')
    mk_srd(e, srdA, sptr[0:2], s_t, 511 * 2752 + 384)
    e(f's_lshl_b32 {s_t}, {s_rb}, 16')
    e(f's_add_u32 {s_t}, {s_t}, {WS_Y}')
    mk_srd(e, srdB, sptr[2:4], s_t, 65536)
    mk_srd(e, srdG, sptr[2:4], WS_GS, 16384)
    vmq = []
    def issue(c):
        out = []
        for hf in range(2):
            out.append(f's_add_u32 m0, {s_ma}, {(c % 4) * SLOT + hf * 3072}')
            out.append(f's_add_u32 {s_t}, {s_ka}, {(c * 64 + hf * 8) * 2752}')
            for m in range(3):
                out.append(f'buffer_load_dwordx4 {voffA[m]}, {srdA}, {s_t} offen offset:{m*1024} lds')
                vmq.append(c)
        out.append(f's_add_u32 m0, {s_mb}, {(c % 4) * SLOT + 24576}')
        out.append(f's_add_u32 {s_t}, {s_kb}, {c * 2048}')
        for ks in range(2):
            out.append(f'buffer_load_dwordx4 {vl16}, {srdB}, {s_t} offen offset:{ks*1024} lds')
            vmq.append(c)
        return out
    def wait_for(tag):
        last = max(i for i, x in enumerate(vmq) if x == tag)
        return f's_waitcnt vmcnt({min(63, len(vmq) - 1 - last)})'
    e(f's_lshl_b32 {s_t}, {s_w}, 12')
    e(f's_add_u32 m0, {s_t}, {GSB}')
    e('s_nop 0')
    for m in range(4):
        e(f'buffer_load_dwordx4 {vl16}, {srdG}, {s_t} offen offset:{m*1024} lds')
        vmq.append('G')
    for c in range(4):
        e.ext(issue(c))
    e(f's_lshl_b32 {s_t}, {s_rb}, 12')
    e(f's_add_u32 {s_t}, {s_t}, {WS_ST}')
    mk_srd(e, srdS, sptr[2:4], s_t, 4096)
    e(f'v_and_b32 {t0}, 15, {vlane}')
    e(f'v_and_b32 {t1}, 48, {vlane}')
    e(f'v_lshl_add_u32 {t0}, {t0}, 6, {t1}')
    for tb in range(4):
        e(f'buffer_load_dwordx4 {STT[tb]}, {t0}, {srdS}, 0 offen offset:{tb * 1024}')
        vmq.append('S')
    e(f's_mul_i32 {s_t}, {s_rb}, {4 * 43 * 1024}')
    e(f's_add_u32 {s_t}, {s_t}, {WS_F}')
    mk_srd(e, srdF, sptr[2:4], s_t, 4 * 43 * 1024)
    e(f'v_lshrrev_b32 {t0}, 2, {vlane}')
    e(f'v_and_b32 {t1}, 6, {t0}')
    e(f'v_mul_u32_u24 {t0}, 384, {t0}')
    e(f'v_and_b32 {t2}, 1, {vlane}')
    e(f'v_lshl_add_u32 {t0}, {t2}, 3, {t0}')
    e(f'v_bfe_u32 {t2}, {vlane}, 1, 1')
    e(f's_mul_i32 {s_t}, {s_w}, 6')
    e(f'v_add_u32 {t2}, {s_t}, {t2}')
    for i in range(3):
        e(f'v_add_u32 {t3}, {2 * i}, {t2}')
        e(f'v_xor_b32 {t3}, {t3}, {t1}')
        e(f'v_lshl_add_u32 {abase[i]}, {t3}, 4, {t0}')
    e(f'v_add_u32 {gaddr}, {GSB}, {vl16}')
    def set_addr(c):
        return [f'v_add_u32 {aaddr[i]}, {(c % 4) * SLOT}, {abase[i]}' for i in range(3)] + [f'v_add_u32 {baddr}, {(c % 4) * SLOT + 24576}, {vl16}']
    def reads(c, ks):
        d = ks
        out = [f'ds_read_b64_tr_b16 {AF[d][i].sub(2*u, 2)}, {aaddr[i]} offset:{(32 * ks + 16 * u) * 384}' for i in range(3) for u in range(2)]
        out += [f'ds_read_b128 {BF[d][tb]}, {baddr} offset:{tb * 2048 + ks * 1024}' for tb in range(4)]
        out += [f'ds_read_b128 {BF[d][4]}, {gaddr} offset:{(2 * c + ks) * 1024}']
        return out
    snake = lambda i, n: list(range(n)) if i % 2 == 0 else list(range(n - 1, -1, -1))
    e.ext(set_addr(0))
    e(wait_for(0))
    e('s_barrier')
    e.ext(stamp(1))
    e.ext(reads(0, 0))
    for c in range(8):
        for ks in range(2):
            mf = []
            for i in range(3):
                for tb in snake(i, 5):
                    mf.append(f'{MF} {ACC[i][tb]}, {AF[ks][i]}, {BF[ks][tb]}, {ACC[i][tb] if (c or ks) else 0}')
            gaps = [[] for _ in mf]
            e('s_waitcnt lgkmcnt(0)')
            if ks == 0:
                for i, x in enumerate(reads(c, 1)): gaps[i].append(x)
                if 1 <= c <= 4: gaps[11] += issue(c + 3)
            elif c < 7:
                gaps[0] += set_addr(c + 1)
                gaps[1] += [wait_for(c + 1), 's_barrier']
                for i, x in enumerate(reads(c + 1, 0)): gaps[2 + i].append(x)
            for m, g in zip(mf, gaps):
                e(m); e.ext(g)
    e.ext(stamp(2))
    e(wait_for('S'))
    for tb in range(4): e(f'v_add_f32 {MU[tb]}, {STT[tb][0]}, {STT[tb][2]}')
    xsum4(e, MU, [TM[i] for i in range(4)])
    for tb in range(4):
        e(f'v_mul_f32 {MU[tb]}, 0x3b000000, {MU[tb]}')
        e(f'v_add_f32 {RS[tb]}, {STT[tb][1]}, {STT[tb][3]}')
        for j in (0, 2):
            e(f'v_mul_f32 {STT[tb][j]}, 0x3c800000, {STT[tb][j]}')
            e(f'v_sub_f32 {STT[tb][j]}, {STT[tb][j]}, {MU[tb]}')
            e(f'v_mul_f32 {STT[tb][j]}, {STT[tb][j]}, {STT[tb][j]}')
            e(f'v_fmac_f32 {RS[tb]}, 0x42800000, {STT[tb][j]}')
    xsum4(e, RS, [TM[i] for i in range(4)])
    for tb in range(4):
        e(f'v_mul_f32 {RS[tb]}, 0x3b000000, {RS[tb]}')
        ln_scalars(e, MU[tb], RS[tb], t0)
    for i in range(3):
        for r in range(4):
            e(f'v_mov_b32_dpp {U[4*i+r]}, {ACC[i][4][r]} row_newbcast:0 row_mask:0xf bank_mask:0xf bound_ctrl:0')
            e(f'v_mov_b32_dpp {T[4*i+r]}, {ACC[i][4][r]} row_newbcast:1 row_mask:0xf bank_mask:0xf bound_ctrl:0')
    e(f's_mul_i32 {s_u}, {s_w}, 3')
    e(f's_add_u32 {s_u}, {s_u}, {s_nb0}')
    st_ = opt.get('st', '')
    for i in range(3):
        xs = [ACC[i][tb][r] for tb in range(4) for r in range(4)]
        for tb in range(4):
            for r in range(4):
                e(f'v_fma_f32 {ACC[i][tb][r]}, -{MU[tb]}, {U[4*i+r]}, {ACC[i][tb][r]}')
        for tb in range(4):
            for r in range(4):
                e(f'v_fma_f32 {ACC[i][tb][r]}, {RS[tb]}, {ACC[i][tb][r]}, {T[4*i+r]}')
        silu(e, xs, [TM[j] for j in range(16)])
        e(f's_add_u32 {s_ka}, {s_u}, {i}')
        e(f's_lshr_b32 {s_t}, {s_ka}, 1')
        e(f's_lshl_b32 {s_t}, {s_t}, 10')
        e(f's_and_b32 {s_ka}, {s_ka}, 1')
        e(f's_lshl_b32 {s_ka}, {s_ka}, 3')
        e(f's_add_u32 {s_t}, {s_t}, {s_ka}')
        for tb in range(4):
            e(f'v_cvt_pk_bf16_f32 {ACC[i][tb][0]}, {ACC[i][tb][0]}, {ACC[i][tb][1]}')
            e(f'v_cvt_pk_bf16_f32 {ACC[i][tb][1]}, {ACC[i][tb][2]}, {ACC[i][tb][3]}')
            e(f'buffer_store_dwordx2 {ACC[i][tb][0:2]}, {vl16}, {srdF}, {s_t} offen{st_}')
            if tb < 3: e(f's_add_u32 {s_t}, {s_t}, {43 * 1024}')
    if stamps:
        e('s_waitcnt vmcnt(0)')
        e.ext(stamp(3)); e.ext(stamp(4)); e.ext(stamp(5))
        stamp.dump(e, sptr[2:4], s_w, s_t, ACC[0][0], t2, base=opt.get('stampbase', 0))
    e(f'{name}_done:')
    e('s_endpgm')
    e.l = autopad([], e.l)
    probs = check(e.l, name)
    acc_off = (va.hi + 3) // 4 * 4
    meta = dict(vgpr=acc_off + aa.hi, accum=acc_off, sgpr=sa.hi, lds=LDS_BYTES, block=256, grid=256)
    return e.l, meta, probs
```

```python
import sys
from common import *
from k0 import gen_k0
from k1b import gen_k1
from k2 import gen_k2
from k3 import gen_k3
NAME = 'adaLN_cond__gqa_block_cached__dense_activation_silu__prompt'
HEADER = open('cdna_kernels/' + NAME + '.s.ref').read().split('; Override launch')[0].rstrip() if __import__('os').path.exists('cdna_kernels/' + NAME + '.s.ref') else ''

def full(stamps=False, o=None):
    o = o or {}
    ks = []
    def add(name, res):
        text, meta, probs = res
        for p in probs[:10]: print(p, file=sys.stderr)
        assert not probs, name
        ks.append((name, text, meta))
    sb = lambda i: dict(stampbase=i * 0x40000)
    add('prep_kernel', gen_k0('prep_kernel', stamps, {**sb(1), **o.get('k0', {})}))
    add('attn_kernel', gen_k1('attn_kernel', stamps, o.get('k1', {})))
    add('oproj_kernel', gen_k2('oproj_kernel', 'o', stamps, {**sb(2), **o.get('k2', {})}))
    add('ffn1_kernel', gen_k3('ffn1_kernel', stamps, {**sb(3), **o.get('k3', {})}))
    add('ffn2_kernel', gen_k2('ffn2_kernel', 'f', stamps, {**sb(4), **o.get('k4', {})}))
    return wrap(ks, HEADER)

if __name__ == '__main__':
    o = dict(k1=dict(ost=' sc1'))
    open('full_st.s', 'w').write(full(True, o))
    open('full.s', 'w').write(full(False, o))
```

```python
from cg import *

WS_H = 0
WS_O = 2 << 20
WS_Y = 18 << 20
WS_X1 = 20 << 20
WS_F = 22 << 20
WS_ST = 28 << 20
WS_MOD = 29 << 20
WS_GS = (29 << 20) + 8192
WS_MP = 30 << 20
WS_WOF = 32 << 20
WS_W2F = 36 << 20
WS_W1F = 38 << 20
WS_WQF = 40 << 20
WS_FL = 31 << 20
FL_BYTES = 10240
MF = 'v_mfma_f32_16x16x32_bf16'
import struct
C_SCALE = 1.4426950408889634 * 128 ** -0.5
f2h = lambda x: hex(struct.unpack('<I', struct.pack('<f', x))[0])
snake = lambda i, n=4: list(range(n)) if i % 2 == 0 else list(range(n - 1, -1, -1))
WS_STAMP = 64 << 20

class Stream:
    def __init__(self):
        self.l = []
    def __call__(self, t):
        t = t.strip()
        self.l.append('    ' + t if not is_label(t) else t)
    def ext(self, xs):
        for x in xs: self(x)

def wrap(kernels, header=''):
    out = [header] if header else []
    for name, text, m in kernels:
        out.append(f'; @launch kernel={name} grid=({m["grid"]},1,1) block=({m["block"]},1,1) lds={m["lds"]}')
    out.append('.amdgcn_target "amdgcn-amd-amdhsa--gfx950"')
    out.append('.text')
    seen = set()
    for name, text, m in kernels:
        if name in seen: continue
        seen.add(name)
        out += [f'.globl {name}', '.p2align 8', f'.type {name},@function', f'{name}:'] + text
    out.append('.section .rodata,"a"')
    seen = set()
    for name, text, m in kernels:
        if name in seen: continue
        seen.add(name)
        out += ['.p2align 6', f'.amdhsa_kernel {name}',
                f'  .amdhsa_next_free_vgpr {m["vgpr"]}', f'  .amdhsa_next_free_sgpr {m["sgpr"]}',
                f'  .amdhsa_accum_offset {m["accum"]}', '  .amdhsa_group_segment_fixed_size 0',
                '  .amdhsa_kernarg_size 104', '  .amdhsa_user_sgpr_count 2',
                '  .amdhsa_user_sgpr_kernarg_segment_ptr 1', '  .amdhsa_system_sgpr_workgroup_id_x 1',
                '  .amdhsa_float_denorm_mode_32 3',
                '.end_amdhsa_kernel']
    return '\n'.join(out) + '\n'

def mk_srd(e, srd, ptr, off_s, nrec):
    e(f's_add_u32 {srd[0]}, {ptr[0]}, {off_s}')
    e(f's_addc_u32 {srd[1]}, {ptr[1]}, 0')
    e(f's_mov_b32 {srd[2]}, {hex(nrec)}')
    e(f's_mov_b32 {srd[3]}, 0x20000')

class Stamps:
    def __init__(self, on, sa, n=6):
        self.on, self.n = on, n
        if on:
            self.r = sa(4 * n, 4); self.srd = sa(4)
    def __call__(self, i):
        if not self.on: return []
        r = self.r
        return [f's_memtime {r[4*i:4*i+2]}', f's_memrealtime {r[4*i+2:4*i+4]}', 's_waitcnt lgkmcnt(0)']
    def dump(self, e, wsptr, s_w, s_t, vtmp, vaddr, base=0):
        if not self.on: return
        mk_srd(e, self.srd, wsptr, WS_STAMP + base, 0x40000)
        e(f's_lshl_b32 {s_t}, s2, 3')
        e(f's_add_u32 {s_t}, {s_t}, {s_w}')
        e(f's_lshl_b32 {s_t}, {s_t}, 7')
        e(f'v_mov_b32 {vaddr}, {s_t}')
        big = R('v', vtmp.base, 4 * self.n)
        for i in range(4 * self.n):
            e(f'v_mov_b32 {big[i]}, {self.r[i]}')
        for i in range(self.n):
            e(f'buffer_store_dwordx4 {big[4*i:4*i+4]}, {vaddr}, {self.srd}, 0 offen offset:{16*i}')

def rnd_bf16(e, dst, src):
    e(f'v_cvt_pk_bf16_f32 {dst}, {src}, {src}')
    e(f'v_and_b32 {dst}, 0xffff0000, {dst}')

def xsum4(e, regs, tmps, op='v_add_f32'):
    for sw in ('v_permlane32_swap_b32', 'v_permlane16_swap_b32'):
        for r, t in zip(regs, tmps): e(f'v_mov_b32 {t}, {r}')
        e('s_nop 1')
        for r, t in zip(regs, tmps): e(f'{sw} {t}, {r}')
        for r, t in zip(regs, tmps): e(f'{op} {r}, {t}, {r}')

def ln_scalars(e, mean, var, tmp):
    rnd_bf16(e, mean, mean)
    e(f'v_max_f32 {var}, 0, {var}')
    rnd_bf16(e, var, var)
    e(f'v_add_f32 {var}, 0x3727c5ac, {var}')
    rnd_bf16(e, var, var)
    e(f'v_sqrt_f32 {var}, {var}')
    e('s_nop 0')
    rnd_bf16(e, var, var)
    e(f'v_rcp_f32 {var}, {var}')
    e('s_nop 0')

def silu(e, xs, tmps):
    for x, t in zip(xs, tmps): e(f'v_mul_f32 {t}, 0xbfb8aa3b, {x}')
    for x, t in zip(xs, tmps): e(f'v_exp_f32 {t}, {t}')
    for x, t in zip(xs, tmps): e(f'v_add_f32 {t}, 1.0, {t}')
    for x, t in zip(xs, tmps): e(f'v_rcp_f32 {t}, {t}')
    for x, t in zip(xs, tmps): e(f'v_mul_f32 {x}, {x}, {t}')

def tile128_src(e, dst, vlane, t0, t1, t2, stride):
    e(f'v_lshrrev_b32 {t0}, 3, {vlane}')
    e(f'v_and_b32 {t1}, 6, {t0}')
    e(f'v_and_b32 {t2}, 7, {vlane}')
    e(f'v_xor_b32 {t1}, {t1}, {t2}')
    e(f'v_lshlrev_b32 {t1}, 4, {t1}')
    if isinstance(stride, int): e(f'v_mul_u32_u24 {t0}, {stride}, {t0}')
    else: e(f'v_mul_lo_u32 {t0}, {stride}, {t0}')
    e(f'v_add_u32 {dst}, {t0}, {t1}')

def tile128_rd(e, aaddr, vlane, t0, t1, t2, base):
    e(f'v_lshrrev_b32 {t0}, 2, {vlane}')
    e(f'v_and_b32 {t1}, 6, {t0}')
    e(f'v_bfe_u32 {t2}, {vlane}, 1, 1')
    e(f'v_xor_b32 {t1}, {t1}, {t2}')
    e(f'v_lshlrev_b32 {t1}, 4, {t1}')
    e(f'v_lshl_add_u32 {t1}, {t0}, 7, {t1}')
    e(f'v_and_b32 {t2}, 1, {vlane}')
    e(f'v_lshl_add_u32 {t1}, {t2}, 3, {t1}')
    e(f'v_add_u32 {aaddr[0]}, {base}, {t1}')
    for nb in range(1, 4):
        e(f'v_xor_b32 {aaddr[nb]}, {nb << 5}, {aaddr[0]}')

def finish(e, name, va, aa, sa, lds, block=256, grid=256):
    e.l = autopad([], e.l)
    probs = check(e.l, name)
    acc_off = (va.hi + 3) // 4 * 4
    meta = dict(vgpr=acc_off + aa.hi, accum=acc_off, sgpr=sa.hi, lds=lds, block=block, grid=grid)
    return e.l, meta, probs
```

```python
import sys, os
from common import *
from k0c import gen_k0
from km import gen_main
NAME = 'adaLN_cond__gqa_block_cached__dense_activation_silu__prompt'
REF = 'cdna_kernels/' + NAME + '.s.ref'
HEADER = open(REF).read().split('; Override launch')[0].rstrip() if os.path.exists(REF) else ''

def full(stamps=False, o=None):
    o = o or {}
    ks = []
    def add(name, res):
        text, meta, probs = res
        for p in probs[:10]: print(p, file=sys.stderr)
        assert not probs, name
        ks.append((name, text, meta))
    add('prep_kernel', gen_k0('prep_kernel', stamps, {'stampbase': 0x40000, **o.get('k0', {})}))
    add('main_kernel', gen_main('main_kernel', stamps, o.get('km', {})))
    return wrap(ks, HEADER)

def emit(V):
    names = []
    for n, o in V.items():
        open(f'f2_{n}_st.s', 'w').write(full(True, o))
        open(f'f2_{n}.s', 'w').write(full(False, o))
        names += [f'f2_{n}.s', f'f2_{n}_st.s']
    print(' '.join(names))

if __name__ == '__main__':
    emit({'a': {}, 'c': dict(k0=dict(code=('main_kernel', 'main_kernel_end')))})
```

```python
from common import *

def gen_k0(name, stamps=False, opt=None):
    opt = opt or {}
    va = Alloc('v', 1, 128); aa = Alloc('a', 0, 64); sa = Alloc('s', 4, 100)
    XR = va(8, 4); CR = va(4, 4); X = va(16, 4); TF = va(8, 4); TG = va(8, 4)
    ACC = [va(4, 4) for _ in range(4)]
    AF = [va(4, 4) for _ in range(4)]
    PF = va(4, 4); PS = va(8, 4); PR = va(16, 4)
    voffA, vlane, vx, vo, voffQ, vl16 = [va() for _ in range(6)]
    QF = [aa(4, 4) for _ in range(4)]
    aaddr = [va() for _ in range(4)]
    t0, t1, t2, t3 = [va() for _ in range(4)]
    sm2 = va(2, 2); sm, m2 = sm2[0], sm2[1]
    srdW, srdX, srdC, srdH, srdM, srdP = [sa(4) for _ in range(6)]
    sptr = sa(16, 4)
    s_w, s_ct, s_kq, s_t, s_u, s_m0b, s_un, s_qs = [sa() for _ in range(8)]
    stamp = Stamps(stamps, sa)
    RED = 16384; STA = RED + 1024
    QT = STA + 1024
    LDS_BYTES = QT + 16384

    e = Stream()
    e('s_cmp_ge_u32 s2, 256')
    e(f's_cbranch_scc1 {name}_done')
    e(f's_load_dwordx8 {sptr[0:8]}, s[0:1], 0')
    e(f's_load_dwordx4 {sptr[8:12]}, s[0:1], 64')
    e(f's_load_dwordx2 {sptr[12:14]}, s[0:1], 96')
    e.ext(stamp(0))
    e(f'v_and_b32 {vlane}, 63, v0')
    e(f'v_lshrrev_b32 {t0}, 6, v0')
    e(f's_mul_i32 {s_kq}, s2, 1366')
    e(f'v_readfirstlane_b32 {s_w}, {t0}')
    e(f's_lshr_b32 {s_kq}, {s_kq}, 16')
    assert all((i * 1366) >> 16 == i // 48 for i in range(256))
    e(f's_mul_i32 {s_t}, {s_kq}, 48')
    e(f's_sub_u32 {s_ct}, s2, {s_t}')
    tile128_src(e, voffA, vlane, t0, t1, t2, 6144)
    e(f'v_and_b32 {t0}, 7, {vlane}')
    e(f'v_bfe_u32 {t1}, {vlane}, 3, 2')
    e(f'v_lshrrev_b32 {t2}, 5, {vlane}')
    e(f'v_lshlrev_b32 {vx}, 10, {t0}')
    e(f'v_lshl_add_u32 {vx}, {t2}, 6, {vx}')
    e(f'v_lshl_add_u32 {vx}, {t1}, 3, {vx}')
    e(f'v_lshlrev_b32 {vo}, 4, {t0}')
    e(f'v_lshl_add_u32 {vo}, {t1}, 8, {vo}')
    e(f'v_lshl_add_u32 {vo}, {t2}, 10, {vo}')
    e(f'v_lshrrev_b32 {t3}, 4, {vlane}')
    e(f'v_lshlrev_b32 {t3}, 3, {t3}')
    e(f's_lshl_b32 {s_m0b}, {s_w}, 12')
    e(f's_lshl_b32 {s_u}, {s_kq}, 2')
    e(f's_add_u32 {s_u}, {s_u}, {s_w}')
    e('s_waitcnt lgkmcnt(0)')
    mk_srd(e, srdC, sptr[8:10], 0, 1024)
    e(f's_lshl_b32 {s_t}, {s_u}, 6')
    for u in range(2):
        e(f'buffer_load_dwordx2 {CR[2*u:2*u+2]}, {t3}, {srdC}, {s_t} offen offset:{u * 32}')
    e(f's_lshl_b32 {s_t}, {s_ct}, 7')
    mk_srd(e, srdW, sptr[10:12], s_t, 511 * 6144 + 128)
    e(f's_mov_b32 m0, {s_m0b}')
    e(f's_mul_i32 {s_t}, {s_u}, {32 * 6144}')
    for m in range(4):
        e(f'buffer_load_dwordx4 {voffA}, {srdW}, {s_t} offen offset:{m*1024} lds')
        if m < 3: e(f's_add_u32 {s_t}, {s_t}, {8 * 6144 - 1024}')
    e(f's_lshl_b32 {s_t}, s2, 13')
    mk_srd(e, srdX, sptr[0:2], s_t, 8192)
    e(f's_lshl_b32 {s_t}, {s_w}, 8')
    for i in range(2):
        for u in range(2):
            e(f'buffer_load_dwordx2 {XR[4*i+2*u:4*i+2*u+2]}, {vx}, {srdX}, {s_t} offen offset:{i * 128 + u * 32}')
    tile128_src(e, voffQ, vlane, t0, t1, t2, 8192)
    e(f's_and_b32 {s_t}, s2, 7')
    e(f's_lshl_b32 {s_t}, {s_t}, 3')
    e(f's_bfe_u32 {s_u}, s2, 0x10003')
    e(f's_lshl_b32 {s_u}, {s_u}, 2')
    e(f's_add_u32 {s_t}, {s_t}, {s_u}')
    e(f's_add_u32 {s_un}, {s_t}, {s_w}')
    e(f's_lshr_b32 {s_qs}, s2, 4')
    e(f's_lshl_b32 {s_t}, {s_qs}, 18')
    e(f's_lshl_b32 {s_u}, {s_un}, 7')
    e(f's_add_u32 {s_t}, {s_t}, {s_u}')
    mk_srd(e, srdP, sptr[6:8], s_t, 31 * 8192 + 128)
    e(f's_add_u32 m0, {s_m0b}, {QT}')
    for m in range(4):
        e(f's_mov_b32 {s_t}, {m * (65536 - 1024)}')
        e(f'buffer_load_dwordx4 {voffQ}, {srdP}, {s_t} offen offset:{m*1024} lds')
    npf = 4
    e(f'v_lshlrev_b32 {vl16}, 4, {vlane}')
    if opt.get('pf', True):
        e(f's_and_b32 {s_t}, s2, 7')
        e(f's_lshl_b32 {s_t}, {s_t}, 2')
        e(f's_bfe_u32 {s_u}, s2, 0x20003')
        e(f's_add_u32 {s_t}, {s_t}, {s_u}')
        e(f's_lshl_b32 {s_t}, {s_t}, 19')
        e(f's_lshr_b32 {s_u}, s2, 5')
        e(f's_lshl_b32 {s_u}, {s_u}, 2')
        e(f's_add_u32 {s_u}, {s_u}, {s_w}')
        e(f's_lshl_b32 {s_u}, {s_u}, 10')
        for p in (sptr[2:4], sptr[4:6]):
            mk_srd(e, srdP, p, s_t, 0x80000)
            e(f'buffer_load_dwordx4 {PF}, {vl16}, {srdP}, {s_u} offen')
        npf = 6
    if opt.get('code'):
        lab, endlab = opt['code']
        e(f's_getpc_b64 {srdP[0:2]}')
        e(f'{name}_pc:')
        e(f's_add_u32 {srdP[0]}, {srdP[0]}, {lab}-{name}_pc')
        e(f's_addc_u32 {srdP[1]}, {srdP[1]}, 0')
        e(f's_mov_b32 {srdP[2]}, {endlab}-{lab}')
        e(f's_lshr_b32 {s_u}, s2, 3')
        e(f's_lshl_b32 {s_u}, {s_u}, 2')
        e(f's_add_u32 {s_u}, {s_u}, {s_w}')
        e(f's_lshl_b32 {s_u}, {s_u}, 10')
        e(f'buffer_load_dwordx4 {PF}, {vl16}, {srdP}, {s_u} offen')
        npf += 1
    mk_srd(e, srdP, sptr[12:14], WS_FL, FL_BYTES)
    for i in range(4): e(f'v_mov_b32 {PS[i]}, 0')
    e(f'v_lshlrev_b32 {t0}, 4, v0')
    e(f's_lshl_b32 {s_t}, s2, 12')
    e(f'buffer_store_dwordx4 {PS[0:4]}, {t0}, {srdP}, {s_t} offen')
    npf += 1
    tile128_rd(e, aaddr, vlane, t0, t1, t2, s_m0b)
    e(f's_lshr_b32 {s_t}, s2, 1')
    e(f's_lshl_b32 {s_t}, {s_t}, 14')
    e(f's_and_b32 {s_u}, s2, 1')
    e(f's_lshl_b32 {s_u}, {s_u}, 7')
    e(f's_add_u32 {s_t}, {s_t}, {s_u}')
    if WS_H: e(f's_add_u32 {s_t}, {s_t}, {WS_H}')
    mk_srd(e, srdH, sptr[12:14], s_t, 16384 - 128)
    mk_srd(e, srdM, sptr[12:14], WS_MP, 4 * 12288)
    e(f's_waitcnt vmcnt({8 + npf})')
    for i in range(4):
        e(f'v_lshlrev_b32 {TF[2*i]}, 16, {CR[i]}')
        e(f'v_and_b32 {TF[2*i+1]}, 0xffff0000, {CR[i]}')
    silu(e, [TF[i] for i in range(8)], [TG[i] for i in range(8)])
    for i in range(4):
        e(f'v_cvt_pk_bf16_f32 {CR[i]}, {TF[2*i]}, {TF[2*i+1]}')
    e(f's_waitcnt vmcnt({4 + npf})')
    e.ext(stamp(1))
    for nb in range(4):
        for u in range(2):
            e(f'ds_read_b64_tr_b16 {AF[nb].sub(2*u, 2)}, {aaddr[nb]} offset:{u * 2048}')
    e(f'v_and_b32 {t3}, 48, {vlane}')
    e(f's_lshl_b32 {s_t}, {s_w}, 8')
    e(f's_add_u32 {s_t}, {s_t}, {RED}')
    e(f'v_add_u32 {t3}, {s_t}, {t3}')
    e('s_waitcnt lgkmcnt(0)')
    for nb in range(4):
        e(f'{MF} {ACC[nb]}, {AF[nb]}, {CR}, 0')
    e(f's_waitcnt vmcnt({npf})')
    for i in range(8):
        e(f'v_lshlrev_b32 {X[2*i]}, 16, {XR[i]}')
        e(f'v_and_b32 {X[2*i+1]}, 0xffff0000, {XR[i]}')
    for nb in range(4):
        e(f'ds_write_b128 {t3}, {ACC[nb]} offset:{nb * 64}')
    def red8(r):
        xsum4(e, [r], [t0])
        e('s_nop 1')
        e(f'v_add_f32_dpp {r}, {r}, {r} row_ror:8 row_mask:0xf bank_mask:0xf')
    e(f'v_add_f32 {sm}, {X[0]}, {X[1]}')
    for i in range(2, 16): e(f'v_add_f32 {sm}, {sm}, {X[i]}')
    red8(sm)
    e(f'v_mul_f32 {t1}, 0x3c000000, {sm}')
    for i in range(16):
        e(f'v_sub_f32 {PR[i]}, {X[i]}, {t1}')
    e(f'v_mul_f32 {m2}, {PR[0]}, {PR[0]}')
    for i in range(1, 16): e(f'v_fmac_f32 {m2}, {PR[i]}, {PR[i]}')
    red8(m2)
    e(f'v_and_b32 {t2}, 7, {vlane}')
    e(f'v_lshlrev_b32 {t2}, 5, {t2}')
    e(f'v_add_u32 {t2}, {STA}, {t2}')
    e(f's_lshl_b32 {s_t}, {s_w}, 3')
    e(f'v_add_u32 {t1}, {s_t}, {t2}')
    e(f'ds_write_b64 {t1}, {sm2}')
    e('s_waitcnt lgkmcnt(0)')
    e('s_barrier')
    e.ext(stamp(2))
    e(f'ds_read_b128 {PS[0:4]}, {t2}')
    e(f'ds_read_b128 {PS[4:8]}, {t2} offset:16')
    e(f'v_and_b32 {t3}, 48, {vlane}')
    e(f's_lshl_b32 {s_t}, {s_w}, 6')
    e(f's_add_u32 {s_t}, {s_t}, {RED}')
    e(f'v_add_u32 {t3}, {s_t}, {t3}')
    for w in range(4):
        e(f'ds_read_b128 {PR[4*w:4*w+4]}, {t3} offset:{w * 256}')
    e('s_waitcnt lgkmcnt(4)')
    e(f'v_add_f32 {sm}, {PS[0]}, {PS[2]}')
    e(f'v_add_f32 {t0}, {PS[4]}, {PS[6]}')
    e(f'v_add_f32 {sm}, {sm}, {t0}')
    e(f'v_mul_f32 {sm}, 0x3b000000, {sm}')
    e(f'v_add_f32 {m2}, {PS[1]}, {PS[3]}')
    e(f'v_add_f32 {t0}, {PS[5]}, {PS[7]}')
    e(f'v_add_f32 {m2}, {m2}, {t0}')
    for j in (0, 2, 4, 6):
        e(f'v_mul_f32 {PS[j]}, 0x3c000000, {PS[j]}')
        e(f'v_sub_f32 {PS[j]}, {PS[j]}, {sm}')
        e(f'v_mul_f32 {PS[j]}, {PS[j]}, {PS[j]}')
        e(f'v_fmac_f32 {m2}, 0x43000000, {PS[j]}')
    e(f'v_mul_f32 {m2}, 0x3b000000, {m2}')
    ln_scalars(e, sm, m2, t0)
    for i in range(16):
        e(f'v_sub_f32 {X[i]}, {X[i]}, {sm}')
    for i in range(16):
        e(f'v_mul_f32 {X[i]}, {X[i]}, {m2}')
    for i in range(8):
        e(f'v_cvt_pk_f16_f32 {XR[i]}, {X[2*i]}, {X[2*i+1]}')
    st_ = opt.get('st', '')
    e(f's_lshl_b32 {s_t}, {s_w}, 12')
    for i in range(2):
        e(f'buffer_store_dwordx4 {XR[4*i:4*i+4]}, {vo}, {srdH}, {s_t} offen offset:{i * 2048}{st_}')
    e('s_waitcnt lgkmcnt(0)')
    for r in range(4):
        e(f'v_add_f32 {PR[r]}, {PR[r]}, {PR[4+r]}')
        e(f'v_add_f32 {PR[8+r]}, {PR[8+r]}, {PR[12+r]}')
    for r in range(4):
        e(f'v_add_f32 {PR[r]}, {PR[r]}, {PR[8+r]}')
    e(f's_mul_i32 {s_t}, {s_kq}, 12288')
    e(f's_lshl_b32 {s_u}, {s_ct}, 8')
    e(f's_add_u32 {s_t}, {s_t}, {s_u}')
    e(f's_lshl_b32 {s_u}, {s_w}, 6')
    e(f's_add_u32 {s_t}, {s_t}, {s_u}')
    e(f'v_and_b32 {t0}, 15, {vlane}')
    e(f'v_lshlrev_b32 {t0}, 20, {t0}')
    e(f'v_and_b32 {t1}, 48, {vlane}')
    e(f'v_add_u32 {t0}, {t0}, {t1}')
    e(f'buffer_store_dwordx4 {PR[0:4]}, {t0}, {srdM}, {s_t} offen{st_}')
    e(f'v_lshrrev_b32 {t0}, 2, {vlane}')
    e(f'v_and_b32 {t1}, 6, {t0}')
    e(f'v_and_b32 {t2}, 3, {vlane}')
    e(f'v_xor_b32 {t1}, {t1}, {t2}')
    e(f'v_lshlrev_b32 {t1}, 4, {t1}')
    e(f'v_lshl_add_u32 {t1}, {t0}, 7, {t1}')
    e(f's_add_u32 {s_t}, {s_m0b}, {QT}')
    e(f'v_add_u32 {t1}, {s_t}, {t1}')
    e(f'v_xor_b32 {t2}, 64, {t1}')
    e(f's_lshr_b32 {s_t}, {s_un}, 1')
    e(f's_lshl_b32 {s_t}, {s_t}, 4')
    e(f's_add_u32 {s_t}, {s_t}, {s_qs}')
    e(f's_lshl_b32 {s_t}, {s_t}, 13')
    e(f's_and_b32 {s_u}, {s_un}, 1')
    e(f's_lshl_b32 {s_u}, {s_u}, 12')
    e(f's_add_u32 {s_t}, {s_t}, {s_u}')
    e(f's_add_u32 {s_t}, {s_t}, {WS_WQF}')
    mk_srd(e, srdP, sptr[12:14], s_t, 4096)
    e(f's_waitcnt vmcnt({npf - 4 + 3})')
    for i in range(4):
        for u in range(2):
            e(f'ds_read_b64_tr_b16 {QF[i].sub(2*u, 2)}, {t2 if i >> 1 else t1} offset:{u * 2048 + 8 * (i & 1)}')
    e('s_waitcnt lgkmcnt(0)')
    for i in range(4):
        e(f'buffer_store_dwordx4 {QF[i]}, {vl16}, {srdP}, 0 offen offset:{i * 1024}{st_}')
    if stamps:
        e.ext(stamp(3))
        e('s_waitcnt vmcnt(0)')
        e.ext(stamp(4)); e.ext(stamp(5))
        stamp.dump(e, sptr[12:14], s_w, s_t, XR, t2, base=opt.get('stampbase', 0))
    e(f'{name}_done:')
    e('s_endpgm')
    return finish(e, name, va, aa, sa, LDS_BYTES)

if __name__ == '__main__':
    import sys
    text, meta, probs = gen_k0('p_kernel')
    print(meta, len(text), file=sys.stderr)
    for p in probs[:20]: print(p, file=sys.stderr)
    open(f'k0.s', 'w').write(wrap([('p_kernel', text, meta)]))
```

```python
from common import *

KSLOT = lambda i: i * 16384
VSLOT = lambda i: 65536 + i * 16384
XSLOT = lambda i: 131072 + i * 16384
LDS_BYTES = 163840
THRESH_LOG2 = 24
V = lambda b, n=1: R('v', b, n)
A = lambda b, n=1: R('a', b, n)
FW, F1, F2, F3 = 0, 1024, 2048, 6144
SPIN_LIMIT = 400000

class VmQ:
    def __init__(self): self.q = []
    def add(self, tag, n=1): self.q += [tag] * n
    def cnt(self, tag):
        last = max(i for i, x in enumerate(self.q) if x == tag)
        return min(63, len(self.q) - 1 - last)
    def wait(self, tag, extra=''): return f's_waitcnt vmcnt({self.cnt(tag)}){extra}'

def gen_main(name, stamps=False, opt=None):
    opt = opt or {}
    ND = 4
    sa = Alloc('s', 4, 102)
    S = [[[V(4 + 32 * b + 16 * kb + 4 * qb, 4) for qb in range(4)] for kb in range(2)] for b in range(2)]
    P = [[V(68 + 16 * b + 4 * qb, 4) for qb in range(4)] for b in range(2)]
    MI = [V(100 + 4 * qb, 4) for qb in range(4)]
    spare = V(116, 16)
    Q = [[V(132 + 16 * qb + 4 * s_, 4) for s_ in range(4)] for qb in range(4)]
    ONES = V(196, 4)
    kaddr = [V(200 + i) for i in range(4)]
    vaddr = [V(204 + i) for i in range(8)]
    voffK = [V(212 + i) for i in range(4)]
    voffV = [V(216 + i) for i in range(2)]
    vlane = V(218); t0, t1, t2, t3 = [V(219 + i) for i in range(4)]
    MX = [V(223 + i) for i in range(4)]
    LV = [V(227 + i) for i in range(4)]
    vl16 = V(231)
    O = [[A(16 * db + 4 * qb, 4) for qb in range(4)] for db in range(8)]
    KF = [[A(128 + 16 * kb + 4 * s_, 4) for s_ in range(4)] for kb in range(2)]
    VF = [A(160 + 4 * i, 4) for i in range(8)]
    LA = [A(192 + 4 * qb, 4) for qb in range(4)]
    JF = [[A(208 + 16 * un + 4 * nb, 4) for nb in range(4)] for un in range(2)]
    HB = V(4, 128); QACC = O
    jrd, jtmp = V(252), V(253); fwv, fwo = V(254), V(255)
    WF = [[KF[i >> 2][i & 3] for i in range(8)], VF]
    QR = V(132, 64)
    TAB = [QR[0:16], QR[16:32]]; TMP = QR[32:48]
    waddr, voffH, taddr = QR[48], QR[49], QR[50]
    srdK, srdV, srdW, srdH, srdO, srdJ1, srdJ2, srdD1, srdD2, srdF, srdA = [sa(4) for _ in range(11)]
    sptr = sa(8, 4); sp2 = sa(8, 4)
    s_w, s_head, s_qb, s_t, s_u, s_koff, s_voff, s_m0b, s_cnt, s_mode, s_gw, s_str, s_nbs, s_rb, s_cb, s_ka, s_uns, s_jrow = [sa() for _ in range(18)]
    NSTAMP = 12
    if stamps:
        s_tm = sa(4, 4)
    TB = XSLOT(1)
    STV = V(252, 1)
    def stamp(i):
        if not stamps: return []
        return [f's_memrealtime {s_tm[0:2]}', f's_memtime {s_tm[2:4]}', 's_waitcnt lgkmcnt(0)', f'v_writelane_b32 v3, {s_tm[0]}, {i}', f'v_writelane_b32 v3, {s_tm[2]}, {32 + i}']
    vm = VmQ()
    sc1 = ' sc1'

    pro = Stream(); e = pro
    e(f's_cmp_ge_u32 s2, 256')
    e(f's_cbranch_scc1 {name}_done')
    e(f's_mov_b32 {s_mode}, 0')
    if stamps: e('v_mov_b32 v3, 0')
    e(f'{name}_top:')
    e(f's_load_dwordx4 {sptr[0:4]}, s[0:1], 8')
    e(f's_load_dwordx2 {sptr[6:8]}, s[0:1], 96')
    e(f's_load_dwordx2 {sp2[0:2]}, s[0:1], 32')
    e(f's_load_dwordx4 {sp2[4:8]}, s[0:1], 48')
    e.ext(stamp(0))
    e(f'v_and_b32 {vlane}, 63, v0')
    e(f'v_lshrrev_b32 {t0}, 6, v0')
    e(f's_and_b32 {s_head}, s2, 7')
    e(f'v_readfirstlane_b32 {s_w}, {t0}')
    e(f's_lshl_b32 {s_head}, {s_head}, 2')
    e(f's_lshr_b32 {s_t}, s2, 6')
    e(f's_add_u32 {s_rb}, {s_head}, {s_t}')
    e(f's_bfe_u32 {s_cb}, s2, 0x30003')
    e(f's_bfe_u32 {s_t}, s2, 0x20003')
    e(f's_add_u32 {s_head}, {s_head}, {s_t}')
    e(f's_lshr_b32 {s_qb}, s2, 5')
    e(f'v_lshlrev_b32 {vl16}, 4, {vlane}')
    e(f's_lshl_b32 {s_t}, {s_w}, 16')
    e(f'v_add_u32 {voffH}, {s_t}, {vl16}')
    e(f's_lshl_b32 {s_m0b}, {s_w}, 12')
    e(f'v_lshlrev_b32 {taddr}, 4, v0')
    e(f's_lshl_b32 {s_t}, {s_head}, 17')
    e(f's_add_u32 {s_t}, {s_t}, {WS_WQF}')
    e(f's_lshl_b32 {s_u}, {s_qb}, 18')
    if WS_H: e(f's_add_u32 {s_u}, {s_u}, {WS_H}')
    e(f's_waitcnt lgkmcnt(0)')
    mk_srd(e, srdW, sptr[6:8], s_t, 131072)
    mk_srd(e, srdH, sptr[6:8], s_u, 0x40000)
    mk_srd(e, srdJ1, sptr[6:8], WS_MP, 4 * 12288)

    def dma_kv(which, slot_base, soff):
        out = [f's_add_u32 m0, {s_m0b}, {slot_base}']
        for m in range(ND):
            vo = voffK[m] if which == 'K' else voffV[m & 1]
            srd = srdK if which == 'K' else srdV
            out.append(f'buffer_load_dwordx4 {vo}, {srd}, {soff} offen offset:{m*1024} lds')
        return out
    def kv_const(which, tile):
        x = dma_kv(which, (KSLOT if which == 'K' else VSLOT)(tile), s_t)
        vm.add((which, tile), ND)
        return [x[0], f's_mov_b32 {s_t}, {tile * 16384}'] + x[1:]
    WSLOT = [KSLOT(1), VSLOT(1), KSLOT(2), VSLOT(2), KSLOT(3), VSLOT(3), XSLOT(0), VSLOT(2)]
    def hbuf(tile, ks, qb):
        return HB.sub((((tile % 4) * 2 + ks) * 4 + qb) * 4, 4)
    def issue_w(tile):
        st = []
        for qb in range(4):
            st.append(f's_mov_b32 {s_t}, {qb * 16384 + tile * 2048}')
            for ks in range(2):
                st.append(f'buffer_load_dwordx4 {hbuf(tile, ks, qb)}, {voffH}, {srdH}, {s_t} offen offset:{ks*1024}')
        st += [f's_add_u32 m0, {s_m0b}, {WSLOT[tile]}', f's_add_u32 {s_t}, {s_m0b}, {tile * 16384}']
        for m in range(ND):
            st.append(f'buffer_load_dwordx4 {vl16}, {srdW}, {s_t} offen offset:{m*1024} lds')
        vm.add(('W', tile), 12)
        return st
    for p in range(4):
        e(f's_mov_b32 {s_t}, {p * 12288}')
        e(f'buffer_load_dwordx4 {QR[4*p:4*p+4]}, {taddr}, {srdJ1}, {s_t} offen')
    vm.add('M', 4)
    WAHEAD = opt.get('wahead', 2)
    for tile in range(WAHEAD):
        e.ext(issue_w(tile))
    e(f'v_lshrrev_b32 {t0}, 4, {vlane}')
    e(f'v_and_b32 {t1}, 15, {vlane}')
    e(f's_lshl_b32 {s_t}, {s_w}, 4')
    e(f'v_add_u32 {t2}, {s_t}, {t0}')
    for m in range(2):
        e(f'v_lshlrev_b32 {t3}, 1, {t0}')
        e(f'v_xor_b32 {t3}, {t3}, {t1}')
        if m: e(f'v_xor_b32 {t3}, 8, {t3}')
        e(f'v_lshlrev_b32 {t3}, 4, {t3}')
        e(f'v_lshl_add_u32 {voffV[m]}, {t2}, 8, {t3}')
    for m in range(4):
        e(f'v_xor_b32 {t3}, {t0}, {t1}')
        if m: e(f'v_xor_b32 {t3}, {4*m}, {t3}')
        e(f'v_lshlrev_b32 {t3}, 4, {t3}')
        e(f'v_lshl_add_u32 {voffK[m]}, {t2}, 8, {t3}')
    e(f'v_xor_b32 {t3}, {t0}, {t1}')
    e(f'v_lshlrev_b32 {t3}, 4, {t3}')
    e(f'v_lshl_add_u32 {kaddr[0]}, {t1}, 8, {t3}')
    for s_ in range(1, 4):
        e(f'v_xor_b32 {kaddr[s_]}, {s_ << 6}, {kaddr[0]}')
    e(f'v_lshrrev_b32 {t2}, 2, {vlane}')
    e(f'v_and_b32 {t3}, 7, {t2}')
    e(f'v_lshlrev_b32 {t3}, 1, {t3}')
    e(f'v_lshlrev_b32 {t2}, 8, {t2}')
    e(f'v_and_b32 {t1}, 3, {vlane}')
    e(f'v_lshrrev_b32 {t0}, 1, {t1}')
    e(f'v_xor_b32 {t0}, {t3}, {t0}')
    e(f'v_lshl_add_u32 {t2}, {t0}, 4, {t2}')
    e(f'v_and_b32 {t0}, 1, {t1}')
    e(f'v_lshl_add_u32 {t2}, {t0}, 3, {t2}')
    e(f'v_add_u32 {vaddr[0]}, {VSLOT(0)}, {t2}')
    for db in range(1, 8):
        e(f'v_xor_b32 {vaddr[db]}, {db << 5}, {vaddr[0]}')
    e(f'v_mov_b32 {t0}, 0x3f803f80')
    e(f'v_cmp_eq_u32 vcc, 0, {t1}')
    e(f's_lshl_b32 {s_t}, {s_head}, 19')
    mk_srd(e, srdK, sptr[0:2], s_t, 0x80000)
    for i in range(4):
        e(f'v_cndmask_b32 {ONES[i]}, 0, {t0}, vcc')
    mk_srd(e, srdV, sptr[2:4], s_t, 0x80000)
    e(f's_lshl_b32 {s_t}, {s_qb}, 21')
    e(f's_lshl_b32 {s_u}, {s_head}, 12')
    e(f's_add_u32 {s_t}, {s_t}, {s_u}')
    e(f's_add_u32 {s_t}, {s_t}, {WS_O}')
    mk_srd(e, srdO, sptr[6:8], s_t, 15 * 131072 + 4096)
    mk_srd(e, srdF, sptr[6:8], WS_FL, FL_BYTES)
    e(f's_lshl_b32 {s_t}, {s_cb}, 19')
    e(f's_lshl_b32 {s_u}, {s_w}, 17')
    e(f's_add_u32 {s_t}, {s_t}, {s_u}')
    e(f's_add_u32 {s_t}, {s_t}, {WS_WOF}')
    mk_srd(e, srdA, sptr[6:8], s_t, 131072)

    e(f's_lshl_b32 {s_koff}, s2, 15')
    e(f's_lshl_b32 {s_voff}, s2, 12')
    e(f's_add_u32 {s_voff}, {s_voff}, {WS_WOF}')
    e(f's_mov_b32 {s_str}, 1024')
    e(f's_mov_b32 {s_nbs}, 1024')
    e(f's_mov_b32 {s_uns}, {128 * 4096}')
    e(f's_mov_b32 {srdJ1[2]}, 32768')
    e(f's_cmp_lt_u32 s2, 128')
    e(f's_cbranch_scc1 {name}_j2')
    e(f's_sub_u32 {s_t}, s2, 128')
    e(f's_lshl_b32 {s_koff}, {s_t}, 15')
    e(f's_lshl_b32 {s_voff}, {s_t}, 12')
    e(f's_add_u32 {s_voff}, {s_voff}, {WS_W2F}')
    e(f's_mov_b32 {s_uns}, {43 * 4096}')
    e(f's_mov_b32 {sp2[0]}, {sp2[6]}')
    e(f's_mov_b32 {sp2[1]}, {sp2[7]}')
    e(f's_cmp_lt_u32 s2, 171')
    e(f's_cbranch_scc1 {name}_j2')
    e(f's_sub_u32 {s_t}, s2, 171')
    e(f's_lshr_b32 {s_u}, {s_t}, 4')
    e(f's_and_b32 {s_t}, {s_t}, 15')
    e(f's_mul_i32 {s_koff}, {s_t}, {32 * 2752}')
    e(f's_lshl_b32 {s_voff}, {s_u}, 10')
    e(f's_add_u32 {s_koff}, {s_koff}, {s_voff}')
    e(f's_lshl_b32 {s_voff}, {s_u}, 9')
    e(f's_add_u32 {s_voff}, {s_voff}, {s_t}')
    e(f's_lshl_b32 {s_voff}, {s_voff}, 10')
    e(f's_add_u32 {s_voff}, {s_voff}, {WS_W1F}')
    e(f's_mov_b32 {s_str}, 2752')
    e(f's_mov_b32 {s_nbs}, 16384')
    e(f's_mov_b32 {s_uns}, 65536')
    e(f's_mov_b32 {sp2[0]}, {sp2[4]}')
    e(f's_mov_b32 {sp2[1]}, {sp2[5]}')
    e(f's_sub_u32 {srdJ1[2]}, {512 * 2752}, {s_koff}')
    e(f's_cmp_lt_u32 s2, 219')
    e(f's_cbranch_scc1 {name}_j2')
    e(f's_mov_b32 {s_koff}, 0')
    e(f's_mov_b32 {s_voff}, 0')
    e(f's_mov_b32 {srdJ1[2]}, 0')
    e(f's_mov_b32 {s_uns}, 0')
    e(f'{name}_j2:')
    e(f's_add_u32 {srdJ1[0]}, {sp2[0]}, {s_koff}')
    e(f's_addc_u32 {srdJ1[1]}, {sp2[1]}, 0')
    e(f's_mov_b32 {srdJ1[3]}, 0x20000')
    e(f's_mul_i32 {s_t}, {s_uns}, {s_w}')
    e(f's_lshl_b32 {s_t}, {s_t}, 1')
    e(f's_add_u32 {s_voff}, {s_voff}, {s_t}')
    e(f's_add_u32 {srdD1[0]}, {sptr[6]}, {s_voff}')
    e(f's_addc_u32 {srdD1[1]}, {sptr[7]}, 0')
    e(f's_lshl_b32 {srdD1[2]}, {s_uns}, 1')
    e(f's_mov_b32 {srdD1[3]}, 0x20000')
    e(f's_lshl_b32 {s_jrow}, {s_w}, 3')
    e(f's_mul_i32 {s_jrow}, {s_jrow}, {s_str}')
    e(f'v_lshrrev_b32 {t0}, 2, {vlane}')
    e(f'v_and_b32 {t1}, 7, {t0}')
    e(f'v_lshlrev_b32 {t1}, 1, {t1}')
    e(f'v_bfe_u32 {t2}, {vlane}, 1, 1')
    e(f'v_xor_b32 {t1}, {t1}, {t2}')
    e(f'v_lshlrev_b32 {t1}, 4, {t1}')
    e(f'v_lshl_add_u32 {t1}, {t0}, 10, {t1}')
    e(f'v_and_b32 {t2}, 1, {vlane}')
    e(f'v_lshl_add_u32 {t1}, {t2}, 3, {t1}')
    e(f's_lshl_b32 {s_t}, {s_w}, 8')
    e(f's_add_u32 {s_t}, {s_t}, {XSLOT(0)}')
    e(f'v_add_u32 {jrd}, {s_t}, {t1}')
    e(f'v_mov_b32 {fwv}, 1')
    e(f's_lshl_b32 {s_gw}, s2, 2')
    e(f'v_lshlrev_b32 {fwo}, 20, v0')
    e(f's_cmp_ge_u32 {s_w}, 2')
    e(f's_cselect_b32 {s_u}, 1.0, 0')
    e(vm.wait('M'))
    def sum4_round(x):
        for r in range(4):
            e(f'v_add_f32 {x[r]}, {x[r]}, {x[4+r]}')
            e(f'v_add_f32 {x[8+r]}, {x[8+r]}, {x[12+r]}')
        for r in range(4): e(f'v_add_f32 {x[r]}, {x[r]}, {x[8+r]}')
        for r in range(4): rnd_bf16(e, x[r], x[r])
    sum4_round(QR)
    for r in range(4): e(f'v_add_f32 {QR[r]}, {s_u}, {QR[r]}')
    for r in range(4): rnd_bf16(e, QR[r], QR[r])
    for r in range(4): e(f'v_mul_f32 {QR[r]}, {f2h(C_SCALE)}, {QR[r]}')
    e(f'v_add_u32 {taddr}, {TB}, {taddr}')
    e(f'ds_write_b128 {taddr}, {QR[0:4]}')
    e(f'v_and_b32 {taddr}, 48, {vlane}')
    e(f'v_add_u32 {taddr}, {TB}, {taddr}')
    def t_reads(n):
        return [f'ds_read_b128 {TAB[n & 1][8*i + 4*u:8*i + 4*u + 4]}, {taddr} offset:{i * 2048 + n * 128 + u * 64}' for i in range(2) for u in range(2)]
    def conv(n):
        out = []
        tb_ = TAB[n & 1]
        for qb in range(4):
            x = hbuf(n >> 1, n & 1, qb); tm = TMP[8 * (qb & 1):8 * (qb & 1) + 8]
            for j in range(8):
                out.append(f'v_fma_mix_f32 {tm[j]}, {x[j >> 1]}, {tb_[8 + j]}, {tb_[j]} op_sel:[{j & 1},0,0] op_sel_hi:[1,0,0]')
            for j in range(4):
                out.append(f'v_cvt_pk_bf16_f32 {x[j]}, {tm[2*j]}, {tm[2*j+1]}')
        return out
    def w_reads(tile, ks):
        return [f'ds_read_b128 {WF[ks][db]}, {waddr} offset:{ks * 8192 + db * 1024}' for db in range(8)]
    set_waddr = lambda tile: f'v_add_u32 {waddr}, {WSLOT[tile]}, {vl16}'
    e(set_waddr(0))
    e(vm.wait(('W', 0), ' lgkmcnt(0)'))
    e('s_barrier')
    e.ext(stamp(1))
    e.ext(t_reads(0)); e.ext(t_reads(1))
    e.ext(w_reads(0, 0)[:6])
    e('s_waitcnt lgkmcnt(6)')
    e.ext(w_reads(0, 0)[6:])
    e.ext(conv(0))
    plan = {}
    for tile in range(WAHEAD, 8): plan.setdefault(max(tile - WAHEAD, tile - 3 if tile >= 4 else 0, 4 if tile == 7 else 0), []).append(('W', tile))
    if opt.get('kvearly'):
        plan.setdefault(1, []).append(('K', 0)); plan.setdefault(2, []).append(('V', 0)); plan.setdefault(3, []).append(('K', 1))
        plan.setdefault(4, []).append(('V', 1)); plan.setdefault(5, []).append(('K', 2))
    else:
        plan.setdefault(8 - WAHEAD, []).extend([('K', 0), ('V', 0), ('K', 1)])
        plan.setdefault(7, []).extend([('V', 1), ('K', 2)])
    def q_conv(s_):
        out = []
        for qb in range(4):
            tm = HB[8 * qb + 32 * (s_ & 1):8 * qb + 32 * (s_ & 1) + 8]
            for j in range(8):
                out.append(f'v_accvgpr_read_b32 {tm[j]}, {QACC[2*s_ + (j >> 2)][qb][j & 3]}')
            for j in range(4):
                out.append(f'v_cvt_pk_bf16_f32 {Q[qb][s_][j]}, {tm[2*j]}, {tm[2*j+1]}')
        return out
    qc = [x for s_ in range(4) for x in q_conv(s_)]
    def k_reads(slot, sub):
        return [f'ds_read_b128 {KF[kb][s_]}, {kaddr[s_]} offset:{KSLOT(slot) + sub * 8192 + kb * 4096}' for kb in range(2) for s_ in range(4)]
    for tile in range(8):
        ops = []
        for (k_, t_) in plan.get(tile, []): ops.append((k_, t_))
        for ks in range(2):
            n = 2 * tile + ks
            mf = []
            for db in range(8):
                for qb in snake(db):
                    c = '0' if n == 0 else QACC[db][qb]
                    mf.append(f'{MF} {QACC[db][qb]}, {WF[ks][db]}, {hbuf(tile, ks, qb)}, {c}')
            mem = [[] for _ in mf]; alu = [[] for _ in mf]
            e('s_waitcnt lgkmcnt(0)')
            g0 = 0
            if ks == 0:
                for i, x in enumerate(w_reads(tile, 1)): mem[2 * i].append(x)
                q0 = len(vm.q)
                lst = []
                for (k_, t_) in ops: lst += issue_w(t_) if k_ == 'W' else kv_const(k_, t_)
                tags = vm.q[q0:]; del vm.q[q0:]
                groups, cur = [], []
                for x in lst:
                    cur.append(x)
                    if x.startswith('buffer'): groups.append(cur); cur = []
                half = (len(groups) + 1) // 2 if tile < 7 else len(groups)
                mine = list(zip(groups[:half], tags[:half]))
            else:
                mine = list(zip(groups[half:], tags[half:]))
                if tile < 7:
                    alu[0].append(set_waddr(tile + 1))
                    mem[1] += [vm.wait(('W', tile + 1)), 's_barrier']
                    for i, x in enumerate(w_reads(tile + 1, 0)): mem[2 + 2 * i].append(x)
                    g0 = 2
                else:
                    mem[1] += [vm.wait(('K', 0)), 's_barrier']
                    q0 = len(vm.q)
                    lst = kv_const('V', 2) + kv_const('K', 3)
                    tags = vm.q[q0:]; del vm.q[q0:]
                    groups, cur = [], []
                    for x in lst:
                        cur.append(x)
                        if x.startswith('buffer'): groups.append(cur); cur = []
                    mine = list(zip(groups, tags))
                    for i, x in enumerate(k_reads(0, 0)): mem[2 + 2 * i].append(x)
            for i, (grp, tag) in enumerate(mine):
                g = 3 + 2 * ((i * 14) // len(mine))
                mem[g] += grp; vm.add(tag)
            if n + 2 < 16:
                for i, x in enumerate(t_reads(n + 2)): mem[18 + 2 * i].append(x)
            if n + 1 < 16 and not opt.get('noconv'):
                cv = conv(n + 1)
                cap = [(1 if mem[g] else 2) for g in range(32)]
                for g in range(g0): cap[g] = 0
                cap[31] = 0
                while sum(cap) < len(cv):
                    for g in range(g0, 31):
                        if sum(cap) < len(cv): cap[g] += 1
                k = 0
                for g in range(32):
                    alu[g] += cv[k:k + cap[g]]; k += cap[g]
            if n == 15:
                k = 0
                for g in range(11, 32):
                    c_ = 1 if mem[g] else 2
                    alu[g] += qc[k:k + c_]; k += c_
                assert k <= 48
                qc = qc[k:]
            for m, g1, g2 in zip(mf, mem, alu):
                e(m); e.ext(g1); e.ext(g2)
    e.ext(stamp(2))

    def v_reads(slot, sub, dbs):
        return [f'ds_read_b64_tr_b16 {VF[db].sub(2*u, 2)}, {vaddr[db]} offset:{slot * 16384 + sub * 8192 + u * 4096}' for db in dbs for u in range(2)]
    def qk_mfmas(buf, cinit):
        out = []
        for kb in range(2):
            for s_ in range(4):
                for qb in range(4):
                    c = S[buf][kb][qb] if s_ else (MI[qb] if cinit else '0')
                    out.append(f'{MF} {S[buf][kb][qb]}, {KF[kb][s_]}, {Q[qb][s_]}, {c}')
        return out
    def pv_mfmas(buf, zero=False):
        out = []
        for qb in snake(1):
            out.append(f'{MF} {LA[qb]}, {ONES}, {P[buf][qb]}, {0 if zero else LA[qb]}')
        for db in range(8):
            for qb in snake(db):
                out.append(f'{MF} {O[db][qb]}, {VF[db]}, {P[buf][qb]}, {0 if zero else O[db][qb]}')
        return out
    els = [(kb, qb, r) for kb in range(2) for qb in range(4) for r in range(4)]
    def op_exp(buf, el):
        kb, qb, r = el; x = S[buf][kb][qb][r]; return f'v_exp_f32 {x}, {x}'
    def op_cvt(buf, el):
        kb, qb, r = el; x = S[buf][kb][qb]
        return f'v_cvt_pk_bf16_f32 {P[buf][qb][2*kb + (r >> 1)]}, {x[r-1]}, {x[r]}'
    def rowmax(st, SS):
        for kb in range(2):
            for r in (0, 2):
                for qb in range(4):
                    x = SS[kb][qb]
                    st(f'v_max3_f32 {MX[qb]}, {x[r]}, {x[r+1]}, {MX[qb]}')
    def finish_max(st):
        xsum4(st, MX, [t0, t1, t2, t3], 'v_max_f32')
        for qb in range(4):
            for r in range(4):
                st(f'v_sub_f32 {MI[qb][r]}, 0, {MX[qb]}')

    nq0 = len(qc) - 144
    e.ext(qc[:nq0]); qc = qc[nq0:]
    e('s_waitcnt lgkmcnt(0)')
    SQ = [[V(68 + 16 * kb + 4 * qb, 4) for qb in range(4)] for kb in range(2)]
    for s_ in range(4):
        part = qc[48 * s_:48 * s_ + 48]
        i = 0
        for kb in range(2):
            for qb in range(4):
                e(f'{MF} {SQ[kb][qb]}, {KF[kb][s_]}, {Q[qb][s_]}, {SQ[kb][qb] if s_ else 0}')
                e.ext(part[6 * i:6 * i + 6]); i += 1
    e.ext(k_reads(0, 1))
    for qb in range(4): e(f'v_mov_b32 {MX[qb]}, 0xff800000')
    e(f's_cmp_lg_u32 {s_mode}, 0')
    e(f's_cbranch_scc1 {name}_maxpass')
    rowmax(e, SQ)
    e(f'{name}_havemax:')
    finish_max(e)
    e(vm.wait(('K', 1), ' lgkmcnt(0)'))
    e('s_barrier')
    e.ext(v_reads(0, 0, range(4)))
    for kb in range(2):
        for qb in range(4):
            for r in range(4):
                e(f'v_add_f32 {S[0][kb][qb][r]}, {SQ[kb][qb][r]}, {MI[qb][r]}')
    NA = 32; NB = 36; NS = NA + NB
    X = opt.get('X', 22)
    exp_pos = [X + 2 * i + (opt.get('skew', 2) if i >= 16 else 0) for i in range(32)]
    sched = []
    for i in range(32):
        sched.append((exp_pos[i], 'exp', i))
        if i & 1: sched.append((exp_pos[i] + opt.get('cvtlag', 1), 'cvt', i))
    assert max(p for p, _, _ in sched) < NS + NA - 1
    fn = dict(exp=op_exp, cvt=op_cvt)
    early = [(k_, i) for p, k_, i in sorted(sched) if p < NS]
    for k_, i in early:
        if k_ == 'exp': e(fn[k_](0, els[i]))
    for k_, i in early:
        if k_ == 'cvt': e(fn[k_](0, els[i]))
    e(f's_mov_b32 {s_voff}, {3 * 16384}')
    e(f's_mov_b32 {s_koff}, {4 * 16384}')
    e(f's_mov_b32 {s_cnt}, 0')
    e.ext(stamp(3))

    LSLOT = [XSLOT(0), XSLOT(1), KSLOT(0), VSLOT(0), KSLOT(1), VSLOT(1), KSLOT(2), VSLOT(2), KSLOT(3)]
    E1 = [A(208, 16), A(224, 16), A(240, 16), V(232, 16), V(116, 16)]
    E2 = [V(132, 16), V(148, 16), V(164, 16), V(180, 16), A(128, 16), A(144, 16)]
    PS_ = [A(160, 16), A(176, 16), A(192, 16), V(52, 16), V(68, 16), V(84, 16), V(100, 16), V(36, 16)]
    STG = [V(4, 16), V(20, 16)]
    LATE = [V(232, 16), V(116, 16), V(4, 16), V(20, 16)]
    NE = len(E1) + len(E2); NP0 = NE + len(LSLOT)
    asrc = [('r', x) for x in E1 + E2] + [('l', x) for x in LSLOT] + [('r', x) for x in PS_] + [('r', x) for x in LATE]
    assert len(asrc) == 32
    def a_load(st):
        kind, d = asrc[st]
        if kind == 'l':
            out = [f's_add_u32 m0, {s_m0b}, {d}', f's_mov_b32 {s_ka}, {st * 4096}']
            out += [f'buffer_load_dwordx4 {vl16}, {srdA}, {s_ka} offen offset:{i*1024}{sc1} lds' for i in range(4)]
        else:
            out = [f's_mov_b32 {s_ka}, {st * 4096}']
            out += [f'buffer_load_dwordx4 {d[4*i:4*i+4]}, {vl16}, {srdA}, {s_ka} offen offset:{i*1024}{sc1}' for i in range(4)]
        return out

    s_o = [0, s_koff, s_str, s_nbs]
    RL = V(248, 4)
    norm_ops, norm_used = [], []
    k = 0
    for ks in range(4):
        for qb in range(4):
            x = V(4 + 12 * (k % 4), 12); k += 1
            for j in range(8):
                norm_ops.append(f'v_accvgpr_read_b32 {x[j]}, {O[2*ks + (j >> 2)][qb][j & 3]}')
            if k <= 2:
                for j in range(8): norm_ops.append(f'v_mul_f32 {x[j]}, {x[j]}, {RL[qb]}')
            else:
                for j in range(0, 8, 2):
                    norm_ops.append(f'v_pk_mul_f32 {x[j:j+2]}, {x[j:j+2]}, {RL[qb & 2:(qb & 2) + 2]} op_sel:[0,{qb & 1}] op_sel_hi:[1,{qb & 1}]')
            for j in range(4):
                norm_ops.append(f'v_cvt_pk_bf16_f32 {x[8 + j]}, {x[2*j]}, {x[2*j+1]}')
            norm_ops.append(f'buffer_store_dwordx4 {x[8:12]}, {t3}, {srdO}, {s_o[qb]} offen offset:{ks * 1024}{sc1}')

    NLOOP = 4
    def build(kind, T0=0):
        first, last = kind == 'first', kind == 'last'
        nt = 8
        mf, info = [], []
        for t in range(nt):
            Am = [] if (last and t == nt - 1) else qk_mfmas((t + 1) & 1, True)
            a0 = len(mf); mf += Am; b0 = len(mf); mf += pv_mfmas(t & 1, zero=(first and t == 0))
            info.append((a0, b0))
        n = len(mf)
        mem = [[] for _ in range(n)]; alu = [[] for _ in range(n)]; pre = [[] for _ in range(n)]
        def spread(ops, gaps, tag):
            gi = 0
            for x in ops:
                mem[gaps[gi]].append((x, tag))
                if x.startswith('buffer'): gi += 1
        for t in range(nt):
            a0, b0 = info[t]
            T = t >> 1; sub = t & 1
            skipA = last and t == nt - 1
            vr = v_reads(T, sub, range(4, 8))
            if skipA: pre[b0] += vr
            else:
                for i, x in enumerate(vr): mem[a0 + 1 + 2 * i].append(x)
            pre[b0].append('s_waitcnt lgkmcnt(0)')
            if not (last and t >= nt - 2):
                for i, x in enumerate(k_reads((T + 1) % 4, sub)): mem[b0 + 1 + 2 * i].append(x)
            pw = b0 + NB - 17
            if sub == 1 and not (last and t == nt - 1):
                mem[pw] += [('WAIT', T), 's_barrier']
                if kind == 'loop' and T == 1:
                    mem[pw + 1] += [f's_cmp_lg_u32 {s_cnt}, 0', f's_cbranch_scc1 {name}_nofw',
                                    f'buffer_store_dword {fwv}, {fwo}, {srdF}, {s_gw} offen offset:{FW}{sc1}', f'{name}_nofw:']
            else:
                mem[pw].append('s_waitcnt lgkmcnt(0)')
            if not (last and t == nt - 1):
                t1_ = t + 1
                for i, x in enumerate(v_reads((t1_ >> 1) % 4, t1_ & 1, range(4))): mem[pw + 2 + 2 * i].append(x)
            dpos = opt.get('dpos', [17, 21, 23, 27, 31, 31])
            if not last or t == 0:
                if sub == 0: d = dma_kv('V', VSLOT((T + 3) % 4), s_voff) + [f's_add_u32 {s_voff}, {s_voff}, 16384']
                else: d = dma_kv('K', KSLOT(T % 4), s_koff) + [f's_add_u32 {s_koff}, {s_koff}, 16384']
                for p, x in zip(dpos, d): mem[a0 + p].append((x, ('G', T0 + T)))
            if first and not opt.get('noj'):
                alu[b0 + 15].append(f'v_xor_b32 {jtmp}, {t << 5}, {vl16}')
                mem[b0 + 17] += [f's_lshl_b32 {s_t}, {s_m0b}, 1', f's_add_u32 m0, {s_t}, {XSLOT(0) + t * 1024}', f's_mul_i32 {s_t}, {s_str}, {t}', f's_add_u32 {s_t}, {s_t}, {s_jrow}',
                                 (f'buffer_load_dwordx4 {jtmp}, {srdJ1}, {s_t} offen lds', 'J')]
            if kind == 'second' and t >= 4 and not opt.get('nojs'):
                for h in range(2):
                    f_ = 2 * (t - 4) + h; un, nb = f_ >> 2, f_ & 3
                    alu[a0 + 17 + 6 * h].append(f'v_xor_b32 {jtmp}, {f_ << 5}, {jrd}')
                    mem[a0 + 19 + 6 * h] += [f'ds_read_b64_tr_b16 {JF[un][nb].sub(2*u, 2)}, {jtmp} offset:{u * 16384}' for u in range(2)]
                    mem[b0 + (17 if h == 0 else 22)] += [f's_mul_i32 {s_t}, {s_nbs}, {nb}'] + ([f's_add_u32 {s_t}, {s_t}, {s_uns}'] if un else []) + \
                        [(f'buffer_store_dwordx4 {JF[un][nb]}, {vl16}, {srdD1}, {s_t} offen{sc1}', 'JS')]
            if kind == 'loop' and t == 2:
                mem[b0 + 17] += [f's_cmp_lg_u32 {s_cnt}, {NLOOP - 1}', f's_cbranch_scc1 {name}_nopl',
                                 f'buffer_load_dwordx4 {V(220, 4)}, {vl16}, {srdF}, 0 offen offset:{FW}{sc1}', f'{name}_nopl:']
            if kind == 'pen' and t < 7:
                stp = [NE, NE + 1, 0, 1, 2, 3, 4][t]
                spread(a_load(stp), [b0 + 17, b0 + 22, b0 + 28, b0 + 34], 'AP')
            if last:
                ag = [a0 + p for p in (19, 21, 23, 25, 27, 29, 31)]
                bg = [b0 + p for p in range(0, 36, 2)]
                L = lambda i: NE + i
                if t in (1, 2, 3, 4, 5, 6): spread(a_load(L(t + 1)), [a0 + p for p in dpos[1:5]], 'AP')
                if t == 6: spread(a_load(L(8)) + a_load(5) + a_load(6), [b0 + 1 + 2 * i for i in range(9)] + [b0 + 22, b0 + 26, b0 + 30], 'AP')
                if t == 7:
                    spread(a_load(7) + a_load(8) + a_load(9) + a_load(10), [b0 + i for i in range(0, 32, 2)], 'AP')
                    alu[b0 + 0] += [f's_mov_b32 {s_o[i]}, {i * 131072}' for i in range(1, 4)]
                    alu[b0 + 1] += [f's_lshl_b32 {s_t}, {s_w}, 19', f'v_add_u32 {t3}, {s_t}, {vl16}']
                    for qb in range(4):
                        alu[b0 + 7 + qb] += [f'v_accvgpr_read_b32 {LV[3 - qb]}, {LA[3 - qb][0]}']
                        alu[b0 + 9 + qb] += [f'v_rcp_f32 {RL[3 - qb]}, {LV[3 - qb]}']
                    k_ = 0
                    for g in range(15, 36):
                        c_ = 1 if mem[b0 + g] else 2
                        for x in norm_ops[k_:k_ + c_]:
                            assert not x.startswith('buffer') or True
                            alu[b0 + g].append(x)
                        k_ += c_
                    norm_used.append(k_)
        for t in range(-1, nt):
            if last and t == nt - 1: continue
            base = info[t][0] if t >= 0 else -NS
            for p, k_, i in sorted(sched):
                g = base + p
                op = fn[k_]((t + 1) & 1, els[i])
                if last and t == nt - 2 and g >= info[nt - 1][1]:
                    pre[info[nt - 1][1]].insert(-1, op)
                elif 0 <= g < n: alu[g].append(op)
        out = Stream()
        for i in range(n):
            out.ext(pre[i]); out(mf[i])
            for x in mem[i]:
                if isinstance(x, tuple) and x[0] == 'WAIT':
                    T = x[1]
                    if kind == 'loop': out(f's_waitcnt vmcnt({4 * ND}) lgkmcnt(0)')
                    else:
                        need = ('G', T0 + T - 2) if T0 + T >= 2 else ('K', T + 2)
                        c = vm.cnt(need)
                        if kind == 'second' and T == 1 and not opt.get('noj'): c = min(c, vm.cnt('J'))
                        out(f's_waitcnt vmcnt({c}) lgkmcnt(0)')
                elif isinstance(x, tuple):
                    out(x[0])
                    if x[0].startswith('buffer') and kind != 'loop': vm.add(x[1])
                else: out(x)
            for x in alu[i]:
                out(x)
                if x.startswith('buffer'): vm.add('OS')
        return out
    firstb = build('first', 0)
    firstb.ext(build('second', 4).l)
    loop = build('loop')
    vm.q = [('G', 22)] * 8 + [('G', 23)] * 8
    lastb = build('pen', 24)
    lastb.ext(stamp(21))
    lastb.ext(build('last', 28).l)
    firstb.ext(stamp(19))
    lp = Stream()
    lp(f'{name}_loop:')
    lp.ext(loop.l)
    lp(f's_add_u32 {s_cnt}, {s_cnt}, 1')
    lp(f's_cmp_lt_u32 {s_cnt}, {NLOOP}')
    lp(f's_cbranch_scc1 {name}_loop')

    def poll(st, label, dst, nreg, voff, soff, imm, masklanes, first_try_loaded=False):
        ld = 'buffer_load_dwordx4' if nreg == 4 else 'buffer_load_dword'
        st(f's_mov_b32 {s_cnt}, 0')
        if first_try_loaded: st(f's_branch {label}_chk')
        st(f'{label}_spin:')
        st(f'{ld} {dst}, {voff}, {srdF}, {soff} offen offset:{imm}{sc1}')
        st('s_waitcnt vmcnt(0)')
        if first_try_loaded: st(f'{label}_chk:')
        if nreg == 4:
            st(f'v_and_b32 {dst[0]}, {dst[0]}, {dst[1]}')
            st(f'v_and_b32 {dst[2]}, {dst[2]}, {dst[3]}')
            st(f'v_and_b32 {dst[0]}, {dst[0]}, {dst[2]}')
        st(f'v_cmp_eq_u32 vcc, 0, {dst[0]}')
        st(f's_add_u32 {s_cnt}, {s_cnt}, 1')
        if masklanes == 64: st(f's_cmp_eq_u64 vcc, 0')
        else:
            st(f's_and_b32 {s_t}, vcc_lo, {hex((1 << masklanes) - 1)}')
            st(f's_cmp_eq_u32 {s_t}, 0')
        st(f's_cbranch_scc1 {label}_ok')
        st('s_sleep 2')
        st(f's_cmp_lt_u32 {s_cnt}, {SPIN_LIMIT}')
        st(f's_cbranch_scc1 {label}_spin')
        st(f'{label}_ok:')
    mid = Stream()
    mid.ext(stamp(20))
    poll(mid, f'{name}_fw', V(220, 4), 4, vl16, 0, FW, 64, first_try_loaded=True)

    epi = Stream(); e = epi
    e.ext(stamp(4))
    TS = VSLOT(3)
    for x in norm_ops[norm_used[0]:]:
        e(x)
        if x.startswith('buffer'): vm.add('OS')
    e.ext(stamp(5))
    srdB, srdR, srdY, srdS, srdM, srdE = srdK, srdV, srdW, srdH, srdJ1, srdJ2
    ACC = [[A(16 * nb + 4 * tb, 4) for tb in range(4)] for nb in range(4)]
    BW = [[A(64 + 16 * d + 4 * tb, 4) for tb in range(4)] for d in range(4)]
    RX = V(248, 8)
    rowoff = V(196); fl1, fl0 = V(197), V(198)
    s_kb = [s_koff, s_voff, s_str, s_nbs]
    NPRE = opt.get('npre', 2)
    for st in range(NP0, NP0 + NPRE):
        e.ext(a_load(st)); vm.add('AP', 4)
    e(f'v_mov_b32 {t2}, {hex((127 + THRESH_LOG2) << 23)}')
    e(f'v_cmp_nle_f32 vcc, {LV[0]}, {t2}')
    for qb in range(1, 4):
        e(f'v_cmp_nle_f32 {sptr[0:2]}, {LV[qb]}, {t2}')
        e('s_nop 0')
        e(f's_or_b64 vcc, vcc, {sptr[0:2]}')
    e(f's_cmp_lg_u64 vcc, 0')
    e(f's_cselect_b32 {s_t}, 1, 0')
    e(f'v_mov_b32 {t2}, {s_t}')
    e(f's_lshl_b32 {s_u}, {s_w}, 2')
    e(f's_add_u32 {s_u}, {s_u}, {TS + 10240}')
    e(f'v_mov_b32 {t3}, {s_u}')
    e('s_barrier')
    e(f'ds_write_b32 {t3}, {t2}')
    e(f'v_mov_b32 {t3}, {TS + 10240}')
    e(f'v_mov_b32 {fl1}, 1')
    e(f'v_lshlrev_b32 {fl0}, 20, v0')
    e(vm.wait('OS', ' lgkmcnt(0)'))
    e('s_barrier')
    CK = V(204, 4)
    e(f'ds_read_b128 {CK}, {t3}')
    e('s_waitcnt lgkmcnt(0)')
    e(f'v_or3_b32 {t2}, {CK[0]}, {CK[1]}, {CK[2]}')
    e(f'v_or_b32 {t2}, {t2}, {CK[3]}')
    e(f's_load_dwordx2 {sptr[0:2]}, s[0:1], 0')
    e(f'v_readfirstlane_b32 {s_cnt}, {t2}')
    e(f's_load_dwordx2 {sptr[2:4]}, s[0:1], 80')
    e(f's_lshl_b32 {s_t}, {s_qb}, 7')
    e(f's_lshl_b32 {s_u}, {s_head}, 2')
    e(f's_add_u32 {s_t}, {s_t}, {s_u}')
    e(f's_andn2_b32 {s_cnt}, {s_cnt}, {s_mode}')
    e(f's_cbranch_scc1 {name}_retry')
    e(f'buffer_store_dword {fl1}, {fl0}, {srdF}, {s_t} offen offset:{F1}{sc1}')
    vm.add('FL')
    e.ext(stamp(18))
    mk_srd(e, srdM, sptr[6:8], WS_MP + 4096, 4 * 12288 - 4096)
    e(f'v_lshlrev_b32 {t0}, 4, v0')
    MPR = V(4, 32)
    for h in range(2):
        for p in range(4):
            e(f's_mov_b32 {s_t}, {p * 12288 + h * 4096}')
            e(f'buffer_load_dwordx4 {MPR[16*h+4*p:16*h+4*p+4]}, {t0}, {srdM}, {s_t} offen')
    vm.add('M2', 8)
    for st in range(NP0 + NPRE, 28):
        e.ext(a_load(st)); vm.add('AP', 4)
    e('s_waitcnt lgkmcnt(0)')
    e(f's_lshl_b32 {s_t}, {s_rb}, 16')
    e(f's_lshl_b32 {s_u}, {s_cb}, 7')
    e(f's_add_u32 {s_t}, {s_t}, {s_u}')
    mk_srd(e, srdR, sptr[0:2], s_t, 63 * 1024 + 128)
    mk_srd(e, srdE, sptr[2:4], s_t, 63 * 1024 + 128)
    e(f'v_and_b32 {t1}, 15, {vlane}')
    e(f'v_lshrrev_b32 {t2}, 4, {vlane}')
    e(f's_lshl_b32 {s_t}, {s_w}, 14')
    e(f'v_lshlrev_b32 {rowoff}, 10, {t1}')
    e(f'v_lshl_add_u32 {rowoff}, {t2}, 3, {rowoff}')
    e(f'v_add_u32 {rowoff}, {s_t}, {rowoff}')
    for nb in range(4):
        e(f'buffer_load_dwordx2 {RX[2*nb:2*nb+2]}, {rowoff}, {srdR}, 0 offen offset:{nb * 32}')
    vm.add('RX', 4)
    e(f's_lshl_b32 {s_t}, {s_rb}, 19')
    e(f's_add_u32 {s_t}, {s_t}, {WS_O}')
    mk_srd(e, srdB, sptr[6:8], s_t, 4 * 131072)
    e(f's_lshl_b32 {s_kb[0]}, {s_w}, 15')
    for tb in range(1, 4): e(f's_add_u32 {s_kb[tb]}, {s_kb[0]}, {tb * 131072}')
    e(vm.wait('M2'))
    sum4_round(MPR[0:16]); sum4_round(MPR[16:32])
    e(f's_cmp_lt_u32 {s_w}, 2')
    e(f's_cselect_b32 {s_u}, 1.0, 0')
    for r in range(4): e(f'v_add_f32 {MPR[16+r]}, {s_u}, {MPR[16+r]}')
    for r in range(4): rnd_bf16(e, MPR[16+r], MPR[16+r])
    e(f'v_add_u32 {t0}, {TS}, {t0}')
    e(f'ds_write_b128 {t0}, {MPR[0:4]}')
    e(f'ds_write_b128 {t0}, {MPR[16:20]} offset:4096')
    e(f's_cselect_b64 vcc, -1, 0')
    for r in range(4): e(f'v_cndmask_b32 {MPR[r]}, {MPR[r]}, {MPR[16+r]}, vcc')
    e(f'v_cvt_pk_bf16_f32 {MPR[4]}, {MPR[0]}, {MPR[1]}')
    e(f'v_cvt_pk_bf16_f32 {MPR[5]}, {MPR[2]}, {MPR[3]}')
    e(f'v_lshrrev_b32 {t1}, 3, v0')
    e(f'v_lshlrev_b32 {t1}, 6, {t1}')
    e(f'v_and_b32 {t2}, 3, v0')
    e(f'v_lshl_add_u32 {t1}, {t2}, 4, {t1}')
    e(f'v_bfe_u32 {t2}, v0, 2, 1')
    e(f'v_lshl_add_u32 {t1}, {t2}, 3, {t1}')
    e(f'v_add_u32 {t1}, {TS + 8192}, {t1}')
    e(f'ds_write_b64 {t1}, {MPR[4:6]}')
    laddr = [V(199), V(200), V(201)]
    for i in range(3):
        e(f's_add_u32 {s_t}, {s_m0b}, {i * 65536}')
        e(f'v_add_u32 {laddr[i]}, {s_t}, {vl16}')
    e(f's_cmp_lg_u32 {s_w}, 0')
    e(f's_cbranch_scc1 {name}_h1_ok')
    e(f'v_lshlrev_b32 {t2}, 2, {vlane}')
    e(f's_lshr_b32 {s_u}, {s_rb}, 2')
    e(f's_lshl_b32 {s_u}, {s_u}, 7')
    poll(e, f'{name}_h1', t3, 1, t2, s_u, F1, 32)
    e('s_waitcnt lgkmcnt(0)')
    e('s_barrier')
    e.ext(stamp(6))
    def b_load(st):
        out = [f'buffer_load_dwordx4 {BW[st & 3][tb]}, {vl16}, {srdB}, {s_kb[tb]} offen offset:{(st & 3) * 1024}{sc1}' for tb in range(4)]
        if (st & 3) == 3: out += [f's_add_u32 {s_kb[i]}, {s_kb[i]}, 4096' for i in range(4)]
        vm.add(('B', st), 4)
        return out
    def l_reads(st):
        d = asrc[st][1]
        return [f'ds_read_b128 {STG[st & 1][4*i:4*i+4]}, {laddr[d >> 16]} offset:{(d & 65535) + i * 1024}' for i in range(4)]
    W1R = [A(128 + 4 * i, 4) for i in range(32)] + [V(132 + 4 * i, 4) for i in range(16)]
    srdW1, srdW2 = srdD1, srdD2
    s_nb0 = s_gw
    def w1_load(ks):
        out = []
        for i in range(3):
            out.append(f's_mov_b32 {s_ka}, {i * 16384 + (ks >> 2) * 4096}')
            out.append(f'buffer_load_dwordx4 {W1R[3*ks+i]}, {vl16}, {srdW1}, {s_ka} offen offset:{(ks & 3) * 1024}{sc1}')
        vm.add(('W1', ks), 3)
        return out
    for st in range(3): e.ext(b_load(st))
    e(f's_mul_i32 {s_nb0}, {s_cb}, 339')
    e(f's_add_u32 {s_nb0}, {s_nb0}, 26')
    e(f's_lshr_b32 {s_nb0}, {s_nb0}, 6')
    e(f's_lshl_b32 {s_nb0}, {s_nb0}, 1')
    starts = [((n * 339 + 26) >> 6) << 1 for n in range(8)]
    assert starts[0] == 0 and starts[7] == 74 and all(starts[i + 1] - starts[i] <= 12 for i in range(7)), starts
    e(f's_mul_i32 {s_t}, {s_w}, 3')
    e(f's_add_u32 {s_t}, {s_t}, {s_nb0}')
    e(f's_lshl_b32 {s_t}, {s_t}, 14')
    e(f's_add_u32 {s_t}, {s_t}, {WS_W1F}')
    mk_srd(e, srdW1, sptr[6:8], s_t, 3 * 16384)
    e(f's_mul_i32 {s_t}, {s_cb}, {43 * 4096}')
    e(f's_add_u32 {s_t}, {s_t}, {WS_W2F}')
    mk_srd(e, srdW2, sptr[6:8], s_t, 43 * 4096)
    late_at = {4: 28, 6: 29, 21: 30, 23: 31}
    NW1A = opt.get('nw1a', 8)
    for st in range(32):
        kind, d = asrc[st]
        af = STG[st & 1] if kind == 'l' else d
        mf = [f'{MF} {ACC[nb][tb]}, {af[4*nb:4*nb+4]}, {BW[st & 3][tb]}, {ACC[nb][tb] if st else 0}' for nb in range(4) for tb in snake(nb)]
        w = vm.cnt(('B', st))
        if st >= 28: w = min(w, vm.cnt(('AL', st)))
        e(f's_waitcnt vmcnt({w})' + (' lgkmcnt(0)' if kind == 'l' else ''))
        ops = []
        if st + 3 < 32: ops += b_load(st + 3)
        if st in late_at:
            ops += a_load(late_at[st]); vm.add(('AL', late_at[st]), 4)
        if st >= 29:
            lo = (st - 29) * NW1A // 3; hi = (st - 28) * NW1A // 3
            for ks in range(lo, hi): ops += w1_load(ks)
        if st + 1 < 32 and asrc[st + 1][0] == 'l': ops += l_reads(st + 1)
        gaps = [[] for _ in mf]
        g = 0
        for x in ops:
            gaps[min(g, 15)].append(x)
            if not x.startswith('s_'): g += 1
        for m, gp in zip(mf, gaps):
            e(m); e.ext(gp)
    e.ext(stamp(7))

    def reduce_tile(lab, ACCX, Z, RED):
        e('s_barrier')
        for w in range(4):
            e(f's_cmp_lg_u32 {s_w}, {w}')
            e(f's_cbranch_scc1 {lab}_w{w}')
            for j in range(1, 4):
                dst = (w + j) & 3
                for nb in range(4):
                    e(f'ds_write_b128 {vl16}, {ACCX[nb][dst]} offset:{(dst * 12 + (j - 1) * 4 + nb) * 1024}')
            for nb in range(4):
                for r in range(4):
                    src = ACCX[nb][w][r]
                    e(f'{"v_accvgpr_read_b32" if src.kind == "a" else "v_mov_b32"} {Z[4*nb+r]}, {src}')
            e(f'{lab}_w{w}:')
        e(f's_mul_i32 {s_t}, {s_w}, {12 * 1024}')
        e(f'v_add_u32 {t2}, {s_t}, {vl16}')
        e('s_waitcnt lgkmcnt(0)')
        e('s_barrier')
        for i in range(12):
            e(f'ds_read_b128 {RED[4*i:4*i+4]}, {t2} offset:{i * 1024}')
    Z = V(4, 16); X = V(20, 16); Y = V(36, 16); RED = V(52, 48); GA = V(100, 16); G2 = V(116, 16); PY = V(232, 8)
    e(f'v_and_b32 {t1}, 48, {vlane}')
    e(f's_lshl_b32 {s_t}, {s_cb}, 8')
    e(f's_add_u32 {s_t}, {s_t}, {TS}')
    tabaddr = V(202)
    e(f'v_add_u32 {tabaddr}, {s_t}, {t1}')
    e('s_nop 4')
    for nb in range(4):
        e(f'ds_read_b128 {GA[4*nb:4*nb+4]}, {tabaddr} offset:{nb * 64}')
        e(f'ds_read_b128 {G2[4*nb:4*nb+4]}, {tabaddr} offset:{4096 + nb * 64}')
    reduce_tile(f'{name}_r1', ACC, Z, RED)
    e(f's_lshl_b32 {s_t}, {s_rb}, 16')
    e(f's_add_u32 {s_t}, {s_t}, {WS_Y}')
    mk_srd(e, srdY, sptr[6:8], s_t, 65536)
    e(f's_lshl_b32 {s_t}, {s_rb}, 12')
    e(f's_add_u32 {s_t}, {s_t}, {WS_ST}')
    mk_srd(e, srdS, sptr[6:8], s_t, 4096)
    for i in range(8):
        e(f'v_lshlrev_b32 {X[2*i]}, 16, {RX[i]}')
        e(f'v_and_b32 {X[2*i+1]}, 0xffff0000, {RX[i]}')
    for j in range(3):
        e(f's_waitcnt lgkmcnt({8 - 4 * j})')
        for i in range(16): e(f'v_add_f32 {Z[i]}, {Z[i]}, {RED[16*j + i]}')
    for i in range(16): e(f'v_fma_f32 {X[i]}, {GA[i]}, {Z[i]}, {X[i]}')
    for i in range(8): e(f'v_cvt_pk_bf16_f32 {RX[i]}, {X[2*i]}, {X[2*i+1]}')
    for i in range(8):
        e(f'v_lshlrev_b32 {X[2*i]}, 16, {RX[i]}')
        e(f'v_and_b32 {X[2*i+1]}, 0xffff0000, {RX[i]}')
    for i in range(16): e(f'v_mul_f32 {Y[i]}, {X[i]}, {G2[i]}')
    for i in range(8): e(f'v_cvt_pk_bf16_f32 {PY[i]}, {Y[2*i]}, {Y[2*i+1]}')
    e(f's_lshl_b32 {s_t}, {s_w}, 14')
    e(f's_lshl_b32 {s_u}, {s_cb}, 11')
    e(f's_add_u32 {s_t}, {s_t}, {s_u}')
    for v_ in range(2):
        e(f'buffer_store_dwordx4 {PY[4*v_:4*v_+4]}, {vl16}, {srdY}, {s_t} offen offset:{v_ * 1024}{sc1}')
    sm2 = V(52, 2); sm, m2 = sm2[0], sm2[1]
    e(f'v_add_f32 {sm}, {X[0]}, {X[1]}')
    for i in range(2, 16): e(f'v_add_f32 {sm}, {sm}, {X[i]}')
    xsum4(e, [sm], [t0])
    e(f'v_mul_f32 {t1}, 0x3c800000, {sm}')
    for i in range(16): e(f'v_sub_f32 {X[i]}, {X[i]}, {t1}')
    e(f'v_mul_f32 {m2}, {X[0]}, {X[0]}')
    for i in range(1, 16): e(f'v_fmac_f32 {m2}, {X[i]}, {X[i]}')
    xsum4(e, [m2], [t0])
    e(f'v_lshrrev_b32 {t1}, 4, {vlane}')
    e(f'v_lshlrev_b32 {t1}, 20, {t1}')
    e(f'v_lshl_add_u32 {t1}, {vlane}, 3, {t1}')
    e(f's_lshl_b32 {s_t}, {s_cb}, 9')
    e(f's_lshl_b32 {s_u}, {s_w}, 7')
    e(f's_add_u32 {s_t}, {s_t}, {s_u}')
    e(f'buffer_store_dwordx2 {sm2}, {t1}, {srdS}, {s_t} offen{sc1}')
    vm.add('YS', 3)
    e.ext(stamp(16))
    NW1B = opt.get('nw1b', 3)
    for ks in range(NW1A, NW1A + NW1B): e.ext(w1_load(ks))
    e(f's_lshl_b32 {s_t}, {s_rb}, 7')
    e(f's_lshl_b32 {s_u}, {s_cb}, 2')
    e(f's_add_u32 {s_t}, {s_t}, {s_u}')
    e(vm.wait('YS'))
    e('s_barrier')
    e(f'buffer_store_dword {fl1}, {fl0}, {srdF}, {s_t} offen offset:{F2}{sc1}')
    vm.add('FL')
    for ks in range(NW1A + NW1B, 16): e.ext(w1_load(ks))
    e.ext(stamp(8))
    W2R = [A(4 * i, 4) for i in range(32)] + [A(128 + 4 * i, 4) for i in range(12)]
    def w2_load(st):
        out = [f's_mul_i32 {s_ka}, {s_w}, {11 * 4096}', f's_add_u32 {s_ka}, {s_ka}, {st * 4096}']
        out += [f'buffer_load_dwordx4 {W2R[4*st+i]}, {vl16}, {srdW2}, {s_ka} offen offset:{i*1024}{sc1}' for i in range(4)]
        vm.add(('W2', st), 4)
        return out
    AC1 = [[V(4 + 12 * tb + 4 * i, 4) for i in range(3)] for tb in range(5)]
    BQ = [V(64 + 4 * i, 4) for i in range(8)]
    STT = [V(96 + 4 * tb, 4) for tb in range(4)]
    U = V(112, 12); T_ = V(204, 12); TM = V(232, 12)
    xaddr = [V(124 + i) for i in range(3)]
    MU = MX; RS = LV
    gsaddr = V(203)
    XB = 65536
    for i in range(3):
        e(f's_mul_i32 {s_t}, {s_w}, 3')
        e(f's_add_u32 {s_t}, {s_t}, {i}')
        e(f's_and_b32 {s_u}, {s_t}, 1')
        e(f's_lshr_b32 {s_t}, {s_t}, 1')
        e(f's_lshl_b32 {s_t}, {s_t}, 12')
        e(f's_lshl_b32 {s_u}, {s_u}, 3')
        e(f's_add_u32 {s_t}, {s_t}, {s_u}')
        e(f's_add_u32 {s_t}, {s_t}, {XB}')
        e(f'v_add_u32 {xaddr[i]}, {s_t}, {vl16}')
    e(f'v_lshrrev_b32 {t1}, 4, {vlane}')
    e(f'v_and_b32 {t0}, 1, {vlane}')
    e(f'v_lshlrev_b32 {t0}, 10, {t0}')
    e(f'v_lshl_add_u32 {gsaddr}, {t1}, 4, {t0}')
    e(f'v_add_u32 {gsaddr}, {TS + 8192}, {gsaddr}')
    e(f'v_and_b32 {t0}, 15, {vlane}')
    e(f'v_lshlrev_b32 {t0}, 3, {t0}')
    e(f'v_lshl_add_u32 {t0}, {t1}, 10, {t0}')
    def b_read(c, ks):
        if c == 4: return f'ds_read_b128 {BQ[ks & 7]}, {gsaddr} offset:{ks * 64}'
        return f'ds_read_b128 {BQ[ks & 7]}, {vl16} offset:{c * 16384 + ks * 1024}'
    BA = 4
    for ks in range(BA): e(b_read(4, ks))
    e(f's_cmp_lg_u32 {s_w}, 0')
    e(f's_cbranch_scc1 {name}_h2_ok')
    e(f'v_lshlrev_b32 {t2}, 2, {vlane}')
    e(f's_lshl_b32 {s_u}, {s_rb}, 7')
    poll(e, f'{name}_h2', t3, 1, t2, s_u, F2, 8)
    e('s_barrier')
    e.ext(stamp(9))
    for c in range(4):
        e(f's_add_u32 {s_t}, {s_m0b}, {c * 16384}'); e(f's_mov_b32 m0, {s_t}'); e('s_nop 0')
        for m in range(4):
            e(f'buffer_load_dwordx4 {vl16}, {srdY}, {s_t} offen offset:{m*1024}{sc1} lds')
        vm.add(('Y', c), 4)
        if c == 0:
            for tb in range(4):
                for j in range(2):
                    e(f'buffer_load_dwordx2 {STT[tb][2*j:2*j+2]}, {t0}, {srdS}, 0 offen offset:{j * 512 + tb * 128}{sc1}')
            vm.add('ST', 8)
    def stats():
        s2 = Stream()
        for tb in range(4): s2(f'v_add_f32 {MU[tb]}, {STT[tb][0]}, {STT[tb][2]}')
        xsum4(s2, MU, [TM[i] for i in range(4)])
        for tb in range(4):
            s2(f'v_mul_f32 {MU[tb]}, 0x3b000000, {MU[tb]}')
            s2(f'v_add_f32 {RS[tb]}, {STT[tb][1]}, {STT[tb][3]}')
            for j in (0, 2):
                s2(f'v_mul_f32 {STT[tb][j]}, 0x3c800000, {STT[tb][j]}')
                s2(f'v_sub_f32 {STT[tb][j]}, {STT[tb][j]}, {MU[tb]}')
                s2(f'v_mul_f32 {STT[tb][j]}, {STT[tb][j]}, {STT[tb][j]}')
                s2(f'v_fmac_f32 {RS[tb]}, 0x42800000, {STT[tb][j]}')
        xsum4(s2, RS, [TM[i] for i in range(4)])
        for tb in range(4):
            s2(f'v_mul_f32 {RS[tb]}, 0x3b000000, {RS[tb]}')
            ln_scalars(s2, MU[tb], RS[tb], t0)
        for i in range(3):
            for r in range(4):
                s2(f'v_mov_b32_dpp {U[4*i+r]}, {AC1[4][i][r]} row_newbcast:0 row_mask:0xf bank_mask:0xf bound_ctrl:0')
                s2(f'v_mov_b32_dpp {T_[4*i+r]}, {AC1[4][i][r]} row_newbcast:1 row_mask:0xf bank_mask:0xf bound_ctrl:0')
        return [x.strip() for x in s2.l if 's_nop' not in x]
    def f_epi(tb):
        s2 = Stream()
        xs = [AC1[tb][i][r] for i in range(3) for r in range(4)]
        for j, x in enumerate(xs): s2(f'v_fma_f32 {x}, -{MU[tb]}, {U[j]}, {x}')
        for j, x in enumerate(xs): s2(f'v_fma_f32 {x}, {RS[tb]}, {x}, {T_[j]}')
        silu(s2, xs, [TM[j] for j in range(12)])
        for i in range(3):
            a_ = AC1[tb][i]
            s2(f'v_cvt_pk_bf16_f32 {a_[0]}, {a_[0]}, {a_[1]}')
            s2(f'v_cvt_pk_bf16_f32 {a_[1]}, {a_[2]}, {a_[3]}')
        return [x.strip() for x in s2.l], [f'ds_write_b64 {xaddr[i]}, {AC1[tb][i][0:2]} offset:{tb * 1024}' for i in range(3)]
    order = [4, 0, 1, 2, 3]
    lq = [(4, ks) for ks in range(BA)]
    w2next = 0
    e(vm.wait(('W1', 15)))
    for pi, c in enumerate(order):
        if c == 0: fill, post = stats(), []
        elif 1 <= c <= 3: fill, post = f_epi(c - 1)
        else: fill, post = [], []
        nf = 0
        for ks in range(16):
            idx = lq.index((c, ks))
            e(f's_waitcnt lgkmcnt({len(lq) - 1 - idx})'); lq = lq[idx + 1:]
            if c == 0 and ks == 1: e(vm.wait('ST'))
            for i in range(3):
                e(f'{MF} {AC1[c][i]}, {W1R[3*ks+i]}, {BQ[ks & 7]}, {AC1[c][i] if ks else 0}')
                if i == 0:
                    nk = ks + BA
                    if nk < 16:
                        e(b_read(c, nk)); lq.append((c, nk))
                    elif pi + 1 < len(order):
                        if nk == 16:
                            e(vm.wait(('Y', order[pi + 1]))); e('s_barrier')
                            if c == 4: e.ext(stamp(13))
                        e(b_read(order[pi + 1], nk - 16)); lq.append((order[pi + 1], nk - 16))
                if i == 1 and c != 4 and (ks & 1) == 0 and w2next < 32:
                    st, nb = divmod(w2next, 4); w2next += 1
                    if nb == 0:
                        e(f's_mul_i32 {s_ka}, {s_w}, {11 * 4096}'); e(f's_add_u32 {s_ka}, {s_ka}, {st * 4096}')
                    e(f'buffer_load_dwordx4 {W2R[4*st+nb]}, {vl16}, {srdW2}, {s_ka} offen offset:{nb*1024}{sc1}')
                    vm.add(('W2', st))
                g = 3 * ks + i
                if g >= 3:
                    tgt = (g - 2) * len(fill) // 44
                    e.ext(fill[nf:tgt]); nf = max(nf, min(tgt, len(fill)))
        e.ext(fill[nf:])
        for x in post:
            e(x); lq.append('w')
    e.ext(stamp(14))
    for st in range(8, 11): e.ext(w2_load(st))
    fill, post = f_epi(3)
    e.ext(fill); e.ext(post)
    srdFF = srdB
    e(f's_mul_i32 {s_t}, {s_rb}, {4 * 43 * 1024}')
    e(f's_add_u32 {s_t}, {s_t}, {WS_F}')
    mk_srd(e, srdFF, sptr[6:8], s_t, 4 * 43 * 1024)
    e(f's_lshl_b32 {s_t}, {s_w}, 10')
    e(f's_add_u32 {s_t}, {s_t}, {XB}')
    e(f'v_add_u32 {t0}, {s_t}, {vl16}')
    e(f's_mul_i32 {s_t}, {s_w}, {43 * 1024}')
    e(f's_lshl_b32 {s_u}, {s_nb0}, 9')
    e(f's_add_u32 {s_t}, {s_t}, {s_u}')
    e(f's_add_u32 {s_u}, {s_t}, 4096')
    e('s_waitcnt lgkmcnt(0)')
    e('s_barrier')
    e.ext(stamp(15))
    FO = V(68, 24)
    for p in range(6): e(f'ds_read_b128 {FO[4*p:4*p+4]}, {t0} offset:{p * 4096}')
    for p in range(6):
        e(f's_waitcnt lgkmcnt({5 - p})')
        e(f'buffer_store_dwordx4 {FO[4*p:4*p+4]}, {vl16}, {srdFF}, {s_t if p < 4 else s_u} offen offset:{(p & 3) * 1024}{sc1}')
    vm.add('FS', 6)
    e(f's_lshl_b32 {s_t}, {s_rb}, 7')
    e(f's_lshl_b32 {s_u}, {s_cb}, 2')
    e(f's_add_u32 {s_t}, {s_t}, {s_u}')
    e(f's_add_u32 {s_t}, {s_t}, {F3}')
    GB = V(100, 16)
    for nb in range(4): e(f'ds_read_b128 {GB[4*nb:4*nb+4]}, {tabaddr} offset:{6144 + nb * 64}')
    e(vm.wait('FS'))
    e('s_barrier')
    e(f'buffer_store_dword {fl1}, {fl0}, {srdF}, {s_t} offen{sc1}')
    vm.add('FL')
    e.ext(stamp(10))
    AC2 = [[V(132 + 16 * nb + 4 * tb, 4) for tb in range(4)] for nb in range(4)]
    FBW = [A(176 + 16 * i, 16) for i in range(5)] + [V(4 + 16 * i, 16) for i in range(6)]
    e(f's_mul_i32 {s_kb[0]}, {s_w}, {11 * 1024}')
    for tb in range(1, 4): e(f's_add_u32 {s_kb[tb]}, {s_kb[0]}, {tb * 43 * 1024}')
    e(f's_cmp_lg_u32 {s_w}, 0')
    e(f's_cbranch_scc1 {name}_h3_ok')
    e(f'v_lshlrev_b32 {t2}, 2, {vlane}')
    e(f's_lshl_b32 {s_u}, {s_rb}, 7')
    e(f's_add_u32 {s_u}, {s_u}, {F3}')
    poll(e, f'{name}_h3', t3, 1, t2, s_u, 0, 8)
    e('s_barrier')
    e.ext(stamp(11))
    def f_load(st):
        out = [f'buffer_load_dwordx4 {FBW[st][4*tb:4*tb+4]}, {vl16}, {srdFF}, {s_kb[tb]} offen offset:{(st & 3) * 1024}{sc1}' for tb in range(4)]
        if (st & 3) == 3: out += [f's_add_u32 {s_kb[i]}, {s_kb[i]}, 4096' for i in range(4)]
        vm.add(('F', st), 4)
        return out
    FAH = opt.get('fahead', 3)
    for st in range(FAH): e.ext(f_load(st))
    for st in range(11):
        mf = [f'{MF} {AC2[nb][tb]}, {W2R[4*st+nb]}, {FBW[st][4*tb:4*tb+4]}, {AC2[nb][tb] if st else 0}' for nb in range(4) for tb in snake(nb)]
        e(vm.wait(('F', st)))
        ops = f_load(st + FAH) if st + FAH < 11 else []
        if st == 10:
            e(f's_cmp_eq_u32 {s_w}, 3')
            e(f's_cbranch_scc1 {name}_skip')
        for i, m in enumerate(mf):
            e(m); e.ext(ops[i:i + 1])
    e(f'{name}_skip:')
    e.ext(stamp(17))
    e('s_nop 7')
    reduce_tile(f'{name}_r2', AC2, Z, RED)
    for i in range(8):
        e(f'v_lshlrev_b32 {X[2*i]}, 16, {RX[i]}')
        e(f'v_and_b32 {X[2*i+1]}, 0xffff0000, {RX[i]}')
    for j in range(3):
        e(f's_waitcnt lgkmcnt({8 - 4 * j})')
        for i in range(16): e(f'v_add_f32 {Z[i]}, {Z[i]}, {RED[16*j + i]}')
    for i in range(16): e(f'v_fma_f32 {X[i]}, {GB[i]}, {Z[i]}, {X[i]}')
    for i in range(8): e(f'v_cvt_pk_bf16_f32 {PY[i]}, {X[2*i]}, {X[2*i+1]}')
    for nb in range(4):
        e(f'buffer_store_dwordx2 {PY[2*nb:2*nb+2]}, {rowoff}, {srdE}, 0 offen offset:{nb * 32}')
    if stamps:
        e('s_waitcnt vmcnt(0)')
        e.ext(stamp(12))
        mk_srd(e, srdM, sptr[6:8], WS_STAMP, 0x40000)
        e(f's_lshl_b32 {s_t}, s2, 2')
        e(f's_add_u32 {s_t}, {s_t}, {s_w}')
        e(f's_lshl_b32 {s_t}, {s_t}, 8')
        e(f'v_lshlrev_b32 {t0}, 2, {vlane}')
        e(f'buffer_store_dword v3, {t0}, {srdM}, {s_t} offen')
    e(f'{name}_done:')
    e('s_endpgm')

    fb = Stream(); e = fb
    e(f'{name}_retry:')
    e(f's_mov_b32 {s_mode}, 1')
    e('s_waitcnt vmcnt(0) lgkmcnt(0)')
    e('s_barrier')
    e(f's_branch {name}_top')
    e(f'{name}_maxpass:')
    e(f's_mov_b32 {s_koff}, {31 * 16384}')
    e(f'{name}_fbloop:')
    e('s_waitcnt lgkmcnt(0)')
    e('s_barrier')
    x = dma_kv('K', KSLOT(0), s_koff)
    e(x[0]); e('s_nop 0'); e.ext(x[1:])
    e('s_waitcnt vmcnt(0)')
    e('s_barrier')
    for sub in (1, 0):
        e.ext(k_reads(0, sub))
        e('s_waitcnt lgkmcnt(0)')
        e.ext(qk_mfmas(0, False))
        e('s_nop 7')
        rowmax(e, S[0])
    e(f's_sub_u32 {s_koff}, {s_koff}, 16384')
    e(f's_cbranch_scc0 {name}_fbloop')
    e.ext(k_reads(0, 1))
    e(f's_branch {name}_havemax')
    e(f'{name}_end:')

    def vmguard(lines, n0):
        out, n, inpoll = [], n0, False
        for x in lines:
            if x.endswith('_spin:'): inpoll = True
            if x.endswith('_ok:'): inpoll = False
            if not is_label(x) and not is_directive(x) and not inpoll:
                i = Ins(x)
                if i.cls == 'wait' and i.vm is not None: n = min(n, i.vm)
                if i.cls in ('vm_ld', 'vm_st', 'dma'):
                    if n >= 60:
                        out.append('    s_waitcnt vmcnt(40)'); n = 40
                    n += 1
            out.append(x)
        return out, n
    lastb.l, nout = vmguard(lastb.l, 17)
    epi.l, _ = vmguard(epi.l, nout)
    pro.l = autopad([], pro.l)
    firstb.l = autopad(pro.l[-60:], firstb.l)
    mid.l = autopad(lp.l[-60:], mid.l)
    lastb.l = autopad(lp.l[-60:] + mid.l, lastb.l)
    epi.l = autopad(lastb.l[-60:], epi.l)
    text = pro.l + firstb.l + lp.l + mid.l + lastb.l + epi.l + fb.l
    i_chk = mid.l.index(f'{name}_fw_chk:')
    tr1 = pro.l + firstb.l + lp.l + lp.l + mid.l[i_chk:] + lastb.l + epi.l
    i_mp = [i for i, x in enumerate(pro.l) if '_maxpass' in x][0]
    i_hm = pro.l.index(f'{name}_havemax:')
    i_m0 = fb.l.index(f'{name}_maxpass:'); i_fl = fb.l.index(f'{name}_fbloop:')
    i_fe = [i for i, x in enumerate(fb.l) if 's_cbranch_scc0' in x][0]
    tr2 = pro.l[:i_mp + 1] + fb.l[i_m0:i_fe + 1] + fb.l[i_fl:] + pro.l[i_hm:] + firstb.l
    def skip_polls(l):
        out, skip = [], None
        for x in l:
            if skip:
                if x == skip: skip = None
                continue
            out.append(x)
            for h in ('h1', 'h2', 'h3'):
                if x.strip() == f's_cbranch_scc1 {name}_{h}_ok' and not skip: skip = f'{name}_{h}_ok:'
        return out
    tr3 = lastb.l + skip_polls(epi.l)
    probs = check(tr1, name) + check(tr2, name + '/fb') + check(tr3, name + '/nopoll')
    meta = dict(vgpr=512, accum=256, sgpr=sa.hi, lds=LDS_BYTES, block=256, grid=256)
    return text, meta, probs

if __name__ == '__main__':
    import sys
    for st in (False, True):
        text, meta, probs = gen_main('main_kernel', stamps=st)
        print(meta, len(text), file=sys.stderr)
        for p in probs[:30]: print(p, file=sys.stderr)
    open(f'km.s', 'w').write(wrap([('main_kernel', text, meta)]))
```

```python
from gen2 import *
o = dict(k0=dict(code=('main_kernel', 'main_kernel_end')))
k0 = gen_k0('prep_kernel', False, o['k0']); km = gen_main('main_kernel', False, {})
emp = (['    s_endpgm'], dict(vgpr=8, accum=8, sgpr=16, lds=0, block=64, grid=8))
A = ('prep_kernel', k0[0], k0[1]); B = ('main_kernel', km[0], km[1]); E = ('empty_kernel', emp[0], emp[1])
open('../cdna_kernels/v1.s', 'w').write(wrap([A, B], HEADER))
open('../cdna_kernels/v2.s', 'w').write(wrap([E, A, B], HEADER))
open('../cdna_kernels/v3.s', 'w').write(wrap([A, B, E], HEADER))
open('../cdna_kernels/v4.s', 'w').write(wrap([E, E, E, A, B], HEADER))
```
